```python
import torch

def _softmax(x, axis=-1):
    return torch.softmax(x, dim=axis)
def _gelu(x):
    return torch.nn.functional.gelu(x, approximate="tanh")
def _silu(x):
    return torch.nn.functional.silu(x)
def _sigmoid(x):
    return torch.sigmoid(x)
def _layernorm(x, axis=-1, eps=1e-5):
    m = x.mean(dim=axis, keepdim=True)
    v = x.var(dim=axis, keepdim=True, unbiased=False)
    return (x - m) / torch.sqrt(v + eps)
def _scatter_add(tgt, idx, src, axis=0):
    return tgt.clone().index_add_(axis, idx, src)
def _segment_sum(src, seg, n):
    out = torch.zeros((n,) + src.shape[1:], dtype=src.dtype)
    return out.index_add_(0, seg, src)
def _pad(x, pw):
    flat = tuple(v for pair in reversed(pw) for v in pair)
    return torch.nn.functional.pad(x, flat)

kernel_name = 'sequential_preLN__sliding_block_cached__moe_arch_mod__decode'

def setup_inputs():

    _w = (lambda a: (lambda t: t.to(torch.bfloat16) if t.is_floating_point() else t)(torch.as_tensor(a)))
    def _A_setup():
        B, Sq, D = 8, 1, 576
        Hq, Hkv, Sk, Dh = 32, 16, 4096, 128
        assert Hq % Hkv == 0, (Hq, Hkv)
        return {
            "x": _w((lambda *s: torch.randn(*s, dtype=torch.bfloat16) * 0.05)(B, Sq, D)),
            "k_cache": _w((lambda *s: torch.randn(*s, dtype=torch.bfloat16) * 3.2)(B, Hkv, Sk, Dh)),
            "v_cache": _w((lambda *s: torch.randn(*s, dtype=torch.bfloat16) * 0.4)(B, Hkv, Sk, Dh)),
            "wq": _w((lambda *s: torch.randn(*s, dtype=torch.bfloat16) * 3.2)(D, Hq * Dh) * (D ** -0.5)),
            "wo": _w((lambda *s: torch.randn(*s, dtype=torch.bfloat16) * 0.4)(Hq * Dh, D) * ((Hq * Dh) ** -0.5)),
        }
    _A_in = _A_setup()

    def _B_setup():
        B, S, D, F, C = 8, 1, 576, 4608, 1
        return {
            "x": _w((lambda *s: torch.randn(*s, dtype=torch.bfloat16) * 0.05)(B, S, D)),
            "w_r": _w((lambda *s: torch.randn(*s, dtype=torch.bfloat16) * 0.4)(D)),
            "w_gate": _w((lambda *s: torch.randn(*s, dtype=torch.bfloat16) * 0.05)(D, F)),
            "w_up": _w((lambda *s: torch.randn(*s, dtype=torch.bfloat16) * 0.05)(D, F)),
            "w_down": _w((lambda *s: torch.randn(*s, dtype=torch.bfloat16) * 0.05)(F, D)),
        }
    _B_in = _B_setup()

    return {
        "A_x": _A_in["x"],
        "A_k_cache": _A_in["k_cache"],
        "A_v_cache": _A_in["v_cache"],
        "A_wq": _A_in["wq"],
        "A_wo": _A_in["wo"],
        "B_x": _B_in["x"],
        "B_w_r": _B_in["w_r"],
        "B_w_gate": _B_in["w_gate"],
        "B_w_up": _B_in["w_up"],
        "B_w_down": _B_in["w_down"],
    }

def reference(A_x, A_k_cache, A_v_cache, A_wq, A_wo, B_x, B_w_r, B_w_gate, B_w_up, B_w_down):
    def _A_ref(x, k_cache, v_cache, wq, wo):
        B, Sq, D = x.shape
        Hq, Dh = 32, 128
        Hkv, Sk = k_cache.shape[1], k_cache.shape[2]
        W = min(4096, max(256, Sk // 4))
        rep = Hq // Hkv
        q = (lambda x, *d: x.permute(*d))((x @ wq).reshape(B, Sq, Hq, Dh), 0, 2, 1, 3)
        k = (lambda x, n, axis: torch.repeat_interleave(x, n, dim=axis))(k_cache[:, :, Sk - W:, :], rep, axis=1)
        v = (lambda x, n, axis: torch.repeat_interleave(x, n, dim=axis))(v_cache[:, :, Sk - W:, :], rep, axis=1)
        scores = torch.einsum("bhqd,bhkd->bhqk", q, k) * (Dh ** -0.5)
        p = _softmax(scores, axis=-1)
        o = torch.einsum("bhqk,bhkd->bhqd", p, v)
        return (lambda x, *d: x.permute(*d))(o, 0, 2, 1, 3).reshape(B, Sq, Hq * Dh) @ wo

    def _B_ref(x, w_r, w_gate, w_up, w_down):
        B, S, D = x.shape
        C = 1
        r = x @ w_r
        idx = torch.argsort(-r, axis=-1)[:, :C]
        idx_e = (lambda x, n, axis: torch.repeat_interleave(x, n, dim=axis))(idx.reshape(B, C, 1), D, axis=2)
        x_sel = (lambda x, i, axis: torch.take_along_dim(x, i, dim=axis))(x, idx_e, axis=1)
        g = _silu(x_sel @ w_gate)
        u = x_sel @ w_up
        y = (g * u) @ w_down
        r_sel = _sigmoid((lambda x, i, axis: torch.take_along_dim(x, i, dim=axis))(r, idx, axis=1))
        y = y * r_sel.reshape(B, C, 1)
        b_off = (torch.arange(B) * S).reshape(B, 1)
        flat_idx = (idx + b_off).reshape(B * C)
        zero = (x * 0.0).reshape(B * S, D)
        upd = _scatter_add(zero, flat_idx, y.reshape(B * C, D), axis=0)
        return x + upd.reshape(B, S, D)

    x = A_x
    h = x + _A_ref(_layernorm(x, axis=-1), A_k_cache, A_v_cache, A_wq, A_wo)
    h2 = h + _B_ref(_layernorm(h, axis=-1), B_w_r, B_w_gate, B_w_up, B_w_down)
    return h2
```

```python
NAME = 'sequential_preLN__sliding_block_cached__moe_arch_mod__decode'
WSB = 536870912
TSOFF = WSB - (1 << 20)

HEADER = open('cdna_kernels/' + NAME + '.s.ref').read().split('; Override launch')[0]

class Asm:
    def __init__(self):
        self.lines = []
        self.nlabel = 0
    def __call__(self, s):
        for l in s.split('\n'):
            l = l.strip()
            if l:
                self.lines.append(('' if l.endswith(':') else '    ') + l)
    def label(self, base='L'):
        self.nlabel += 1
        return '%s_%d' % (base, self.nlabel)
    def text(self):
        return '\n'.join(self.lines) + '\n'

def kernel_file(kernels, launches):
    out = HEADER
    if len(launches) == 1 and launches[0][0] == NAME + '_kernel':
        _, g, b, lds = launches[0]
        out += '; @launch grid=(%d,1,1) block=(%d,1,1) lds=%d\n' % (g, b, lds)
    else:
        for k, g, b, lds in launches:
            out += '; @launch kernel=%s grid=(%d,1,1) block=(%d,1,1) lds=%d\n' % (k, g, b, lds)
    out += '.amdgcn_target "amdgcn-amd-amdhsa--gfx950"\n.text\n'
    for label, body, vgpr, sgpr, acc in kernels:
        out += '.globl %s\n.p2align 8\n.type %s,@function\n%s:\n%s    s_endpgm\n' % (label, label, label, body)
    out += '.section .rodata,"a"\n'
    for label, body, vgpr, sgpr, acc in kernels:
        out += '''.p2align 6
.amdhsa_kernel %s
  .amdhsa_next_free_vgpr %d
  .amdhsa_next_free_sgpr %d
  .amdhsa_accum_offset %d
  .amdhsa_group_segment_fixed_size 0
  .amdhsa_kernarg_size 104
  .amdhsa_user_sgpr_count 2
  .amdhsa_user_sgpr_kernarg_segment_ptr 1
  .amdhsa_system_sgpr_workgroup_id_x 1
  .amdhsa_float_denorm_mode_32 3
.end_amdhsa_kernel
''' % (label, vgpr, sgpr, acc)
    return out
```

```python
import re

TRANS = ('v_exp_f32', 'v_log_f32', 'v_rcp_f32', 'v_rsq_f32', 'v_sqrt_f32', 'v_sin_f32', 'v_cos_f32')

def regs_of(op):
    op = op.strip()
    neg = op.startswith('-')
    if neg: op = op[1:]
    m = re.fullmatch(r'abs\((.*)\)|\|(.*)\|', op)
    if m: op = m.group(1) or m.group(2)
    m = re.fullmatch(r'([vsa])(\d+)', op)
    if m: return m.group(1), {int(m.group(2))}
    m = re.fullmatch(r'([vsa])\[(\d+):(\d+)\]', op)
    if m: return m.group(1), set(range(int(m.group(2)), int(m.group(3)) + 1))
    if op == 'vcc': return 's', {106, 107}
    if op == 'vcc_lo': return 's', {106}
    if op == 'vcc_hi': return 's', {107}
    if op == 'm0': return 's', {124}
    if op == 'exec': return 's', {126, 127}
    if op == 'exec_lo': return 's', {126}
    if op == 'exec_hi': return 's', {127}
    return None, set()

class Ins:
    def __init__(self, text):
        self.text = text
        t = text.split(';')[0].strip()
        self.is_label = t.endswith(':')
        self.is_dir = t.startswith('.')
        self.mn = t.split()[0] if t else ''
        rest = t[len(self.mn):].strip()
        ops = [o.strip() for o in re.split(r',(?![^\[]*\])', rest)] if rest else []
        self.mods = ''
        if ops:
            parts = ops[-1].split(None, 1)
            if len(parts) == 2 and not ops[-1].startswith('hwreg'):
                ops[-1] = parts[0]; self.mods = parts[1]
        self.ops = ops
        mn = self.mn
        self.vr = set(); self.vw = set(); self.sr = set(); self.sw = set()
        self.cls = None
        self.A = self.B = self.C = self.D = set()
        R = [regs_of(o) for o in ops]
        def rd(i):
            if i < len(R):
                k, s = R[i]
                if k == 'v': self.vr |= s
                elif k == 's': self.sr |= s
        def wr(i):
            if i < len(R):
                k, s = R[i]
                if k == 'v': self.vw |= s
                elif k == 's': self.sw |= s
        if self.is_label or self.is_dir or not mn:
            self.cls = 'none'
        elif mn.startswith('v_mfma'):
            self.cls = 'mfma'
            self.D = R[0][1]; self.A = R[1][1] if R[1][0] == 'v' else set(); self.B = R[2][1] if R[2][0] == 'v' else set()
            self.C = R[3][1] if R[3][0] == 'v' else set()
            self.vw = set(self.D); self.vr = self.A | self.B | self.C
        elif mn.startswith('v_'):
            self.cls = 'valu'
            if 'permlane' in mn and 'swap' in mn:
                rd(0); rd(1); wr(0); wr(1)
            else:
                wr(0)
                for i in range(1, len(R)): rd(i)
                if mn.startswith(('v_fmac', 'v_dot2c', 'v_pk_fmac')) or 'dpp' in mn: rd(0)
                if mn.startswith('v_cndmask') and len(ops) == 3: self.sr |= {106, 107}
                if mn.startswith(('v_add_co', 'v_sub_co', 'v_addc_co')): wr(1)
        elif mn.startswith(('buffer_', 'global_')):
            self.cls = 'vmem'
            lds = bool(re.search(r'\blds\b', self.mods)) or 'load_lds' in mn
            self.lds_dma = lds
            if 'load' in mn and not lds:
                wr(0)
                for i in range(1, len(R)): rd(i)
            else:
                for i in range(len(R)): rd(i)
                if 'atomic' in mn and re.search(r'\bsc0\b', self.mods): wr(0)
            self.wide_store = ('store' in mn) and ('x4' in mn or 'x3' in mn)
            if self.wide_store:
                di = 0 if mn.startswith('buffer_') else 1
                self.sdata = R[di][1]
            if lds: self.sr |= {124}
        elif mn.startswith('ds_'):
            self.cls = 'ds'
            if 'read' in mn or 'rtn' in mn or 'permute' in mn or 'swizzle' in mn:
                wr(0)
                for i in range(1, len(R)): rd(i)
            else:
                for i in range(len(R)): rd(i)
        elif mn.startswith('s_'):
            self.cls = 'salu'
            if mn.startswith(('s_cmp', 's_cbranch', 's_branch', 's_waitcnt', 's_nop', 's_barrier', 's_endpgm', 's_sleep', 's_setprio', 's_bitcmp')):
                for i in range(len(R)): rd(i)
            else:
                wr(0)
                for i in range(1, len(R)): rd(i)
        else:
            raise ValueError('unknown instruction ' + text)
        self.dpp = self.cls == 'valu' and ('dpp' in mn or 'row_' in self.mods or 'quad_perm' in self.mods)
        self.perml = self.cls == 'valu' and 'permlane' in mn
        self.rdlane = mn.startswith(('v_readfirstlane', 'v_readlane'))
        self.trans = mn.replace('_e32', '').replace('_e64', '') in TRANS
        self.is_branch = mn.startswith(('s_cbranch', 's_branch', 's_setpc', 's_swappc'))
    def states(self):
        if self.cls == 'none': return 0
        if self.mn == 's_nop': return int(self.ops[0], 0) + 1
        return 1

def need(p, c):
    n = 0
    if p.cls == 'valu':
        if c.cls == 'mfma' and p.vw & c.vr: n = max(n, 2)
        if c.cls == 'vmem' and p.sw & c.sr: n = max(n, 5)
        if c.cls == 'valu' and p.sw & c.sr: n = max(n, 4 if c.mn.startswith(('v_readlane', 'v_writelane')) else 2)
        if c.rdlane and p.vw & c.vr: n = max(n, 1)
        if (c.dpp or c.perml) and p.vw & c.vr: n = max(n, 2)
        if p.trans and c.cls in ('valu',) and p.vw & c.vr: n = max(n, 1)
        if p.trans and c.cls in ('vmem', 'ds') and p.vw & c.vr: n = max(n, 1)
        if p.mn.startswith('v_dot') and c.cls in ('valu', 'vmem', 'ds', 'mfma') and (p.vw & (c.vr | c.vw)):
            same = c.mn == p.mn and not (p.vw & (regs_of(c.ops[1])[1] | regs_of(c.ops[2])[1]))
            if not same: n = max(n, 3)
    if p.cls == 'mfma':
        if c.cls == 'mfma':
            if p.D & (c.A | c.B): n = max(n, 8)
            if p.D & c.C and p.D != c.C: n = max(n, 6)
            if p.D & c.D and p.D != c.C: n = max(n, 8)
        elif c.cls in ('valu', 'vmem', 'ds'):
            if p.D & (c.vr | c.vw): n = max(n, 8)
            if c.cls == 'valu' and p.C & c.vw: n = max(n, 3)
    if p.cls == 'salu' and 124 in p.sw and c.cls == 'vmem' and getattr(c, 'lds_dma', False): n = max(n, 1)
    if p.cls == 'vmem' and p.wide_store and (p.sdata & c.vw): n = max(n, 2 if c.cls in ('valu', 'mfma') else 1)
    return n

def insert_waits(lines):
    out = []
    MAXW = 9
    for text in lines:
        c = Ins(text)
        if c.cls == 'none' and not c.is_label:
            out.append(c); continue
        if c.is_label or c.is_branch:
            dist = 0; req = 0
            for p in reversed(out):
                if dist >= MAXW: break
                if p.is_label and False: break
                if p.cls == 'mfma': req = max(req, 8 - dist - (0 if c.is_label else 1))
                elif p.cls == 'valu':
                    w = 2
                    if p.sw: w = 5
                    if p.mn.startswith('v_dot'): w = max(w, 3)
                    req = max(req, w - dist - (0 if c.is_label else 1))
                elif p.cls == 'vmem' and p.wide_store: req = max(req, 2 - dist - (0 if c.is_label else 1))
                elif p.cls == 'salu' and 124 in p.sw: req = max(req, 1 - dist - (0 if c.is_label else 1))
                dist += p.states()
            if req > 0:
                out.append(Ins('    s_nop %d' % (req - 1)))
            out.append(c); continue
        dist = 0; req = 0
        for p in reversed(out):
            if dist >= MAXW: break
            n = need(p, c)
            if n > dist: req = max(req, n - dist)
            dist += p.states()
        if req > 0:
            out.append(Ins('    s_nop %d' % (req - 1)))
        out.append(c)
    return [i.text for i in out]
```

```python
import sys
from asmlib import *
from hazard import insert_waits

L_FLAG = 0; L_STW = 64; L_QS = 128; L_RED = 2304; L_P = 6400
RS = 1184
L_HN = L_P; L_H = L_P + 8 * RS; L_RW = L_P
L_W = 25600
L_G = L_W; L_U = L_G + 36864 + 32; L_D = L_W + 73984;
L_WQ = L_W; L_XN = L_W + 18432
LDS_BYTES = 136704
W_Q = 0x200000
W_CLR = 0x80000
W_O = W_CLR; W_ST = W_O + 131072; W_P1 = W_ST + 4096; W_H = W_P1 + 147456; W_A = W_H + 73728; W_P2 = W_A + 73728
CLR_LANES = 177
assert W_P2 + 294912 <= W_CLR + 256 * CLR_LANES * 16
WS_REC = 0x300000
OOB = 0x7ffffff0
LOG2E = 0x3fb8aa3b
SCALE = 0x3db504f3
POLL_MAX = 1 << 14
WARM_SLICES = 8

def v(a, n=1): return 'v%d' % a if n == 1 else 'v[%d:%d]' % (a, a + n - 1)

def gen(stamps=False, kvflag='nt', wflag='nt', wqflag='nt', force_global=False):
    a = Asm()
    nst = [0]
    def stamp(i):
        if stamps: a('s_memrealtime s[%d:%d]' % (64 + 2 * i, 65 + 2 * i))
    def srd(d, p, size):
        a('s_mov_b32 s%d, s%d\ns_mov_b32 s%d, s%d\ns_mov_b32 s%d, %d\ns_mov_b32 s%d, 0x20000' % (d, p, d + 1, p + 1, d + 2, size, d + 3))
    def setexec(lo, hi):
        a('s_mov_b32 exec_lo, 0x%x\ns_mov_b32 exec_hi, 0x%x' % (lo, hi))
    def fullexec(): a('s_mov_b64 exec, -1')
    def consts():
        a('s_mov_b32 s98, 0x05040100\ns_mov_b32 s99, 0x07060302\ns_mov_b32 s100, 0xffff0000')
        if stamps:
            for i in range(1, 16): a('s_mov_b64 s[%d:%d], 0' % (64 + 2 * i, 65 + 2 * i))
    def bf16r(dst, src, tmp=None):
        a('v_cvt_pk_bf16_f32 %s, %s, %s' % (v(dst), v(src), v(src)))
        a('v_lshlrev_b32 %s, 16, %s' % (v(dst), v(dst)))
    def store_lg(instr):
        lg = a.label('L_sg'); ld = a.label('L_sd')
        a('s_cmp_eq_u32 s96, 0')
        a('s_cbranch_scc1 %s' % lg)
        for i in instr: a(i)
        a('s_branch %s' % ld)
        a('%s:' % lg)
        for i in instr: a(i + ' sc1')
        a('%s:' % ld)
    def lds_spin(off, target):
        lp = a.label('L_spin'); dn = a.label('L_spd')
        a('s_mov_b32 s97, 0')
        a('%s:' % lp)
        a('ds_read_b32 v10, v4 offset:%d' % off)
        a('s_add_u32 s97, s97, 1')
        a('s_waitcnt lgkmcnt(0)')
        a('v_readfirstlane_b32 s57, v10')
        a('s_cmp_ge_u32 s97, %d' % (POLL_MAX * 8))
        a('s_cbranch_scc1 %s' % dn)
        a('s_cmp_lt_u32 s57, %d' % target)
        a('s_cbranch_scc1 %s' % lp)
        a('%s:' % dn)
    def poll(loads, groups, tmp, pre=None):
        lp = a.label('L_poll'); dn = a.label('L_pdone')
        a('s_mov_b32 s97, 0')
        a('%s:' % lp)
        for l in loads: a(l)
        n = len(loads)
        first = True
        for k, regs in enumerate(groups):
            a('s_waitcnt vmcnt(%d)' % (n - 1 - k))
            regs = list(regs)
            if first:
                if len(regs) == 1: a('v_mov_b32 %s, %s' % (v(tmp), v(regs.pop(0))))
                else: a('v_max_u32 %s, %s, %s' % (v(tmp), v(regs.pop(0)), v(regs.pop(0))))
                first = False
            while len(regs) >= 2:
                a('v_max3_u32 %s, %s, %s, %s' % (v(tmp), v(regs.pop(0)), v(regs.pop(0)), v(tmp)))
            if regs: a('v_max_u32 %s, %s, %s' % (v(tmp), v(regs.pop(0)), v(tmp)))
        a('v_cmp_eq_u32 vcc, -1, %s' % v(tmp))
        a('s_cbranch_vccz %s' % dn)
        a('s_add_u32 s97, s97, 1')
        a('s_cmp_lt_u32 s97, %d' % POLL_MAX)
        a('s_cbranch_scc1 %s' % lp)
        a('%s:' % dn)
    def layernorm(D, F, N, T):
        for k in range(9):
            a('v_lshlrev_b32 %s, 16, %s' % (v(F + 2 * k), v(D[k])))
            a('v_and_b32 %s, s100, %s' % (v(F + 2 * k + 1), v(D[k])))
        s0, s1, q0, q1, t0, t1 = range(T, T + 6)
        a('v_add_f32 %s, %s, %s' % (v(s0), v(F), v(F + 2)))
        a('v_add_f32 %s, %s, %s' % (v(s1), v(F + 1), v(F + 3)))
        a('v_mul_f32 %s, %s, %s' % (v(q0), v(F), v(F)))
        a('v_mul_f32 %s, %s, %s' % (v(q1), v(F + 1), v(F + 1)))
        a('v_fmac_f32 %s, %s, %s' % (v(q0), v(F + 2), v(F + 2)))
        a('v_fmac_f32 %s, %s, %s' % (v(q1), v(F + 3), v(F + 3)))
        for k in range(2, 9):
            a('v_add_f32 %s, %s, %s' % (v(s0), v(s0), v(F + 2 * k)))
            a('v_add_f32 %s, %s, %s' % (v(s1), v(s1), v(F + 2 * k + 1)))
            a('v_fmac_f32 %s, %s, %s' % (v(q0), v(F + 2 * k), v(F + 2 * k)))
            a('v_fmac_f32 %s, %s, %s' % (v(q1), v(F + 2 * k + 1), v(F + 2 * k + 1)))
        a('v_add_f32 %s, %s, %s' % (v(s0), v(s0), v(s1)))
        a('v_add_f32 %s, %s, %s' % (v(q0), v(q0), v(q1)))
        for r in (8, 4, 2, 1):
            a('v_add_f32_dpp %s, %s, %s row_ror:%d row_mask:0xf bank_mask:0xf' % (v(s0), v(s0), v(s0), r))
            a('v_add_f32_dpp %s, %s, %s row_ror:%d row_mask:0xf bank_mask:0xf' % (v(q0), v(q0), v(q0), r))
        a('v_mov_b32 %s, %s' % (v(s1), v(s0)))
        a('v_mov_b32 %s, %s' % (v(q1), v(q0)))
        a('v_permlane16_swap_b32 %s, %s' % (v(s0), v(s1)))
        a('v_permlane16_swap_b32 %s, %s' % (v(q0), v(q1)))
        a('v_add_f32 %s, %s, %s' % (v(s0), v(s0), v(s1)))
        a('v_add_f32 %s, %s, %s' % (v(q0), v(q0), v(q1)))
        inv = 0x3ae38e39
        a('v_mul_f32 %s, 0x%x, %s' % (v(s0), inv, v(s0)))
        a('v_mul_f32 %s, 0x%x, %s' % (v(q0), inv, v(q0)))
        a('v_fma_f32 %s, -%s, %s, %s' % (v(q0), v(s0), v(s0), v(q0)))
        a('v_max_f32 %s, 0, %s' % (v(q0), v(q0)))
        a('v_cvt_pk_bf16_f32 %s, %s, %s' % (v(t0), v(s0), v(q0)))
        a('v_lshlrev_b32 %s, 16, %s' % (v(s0), v(t0)))
        a('v_and_b32 %s, s100, %s' % (v(q0), v(t0)))
        a('v_add_f32 %s, 0x3727c5ac, %s' % (v(q0), v(q0)))
        bf16r(q0, q0)
        a('v_sqrt_f32 %s, %s' % (v(q0), v(q0)))
        bf16r(q0, q0)
        a('v_rcp_f32 %s, %s' % (v(q0), v(q0)))
        for k in range(9):
            a('v_sub_f32 %s, %s, %s' % (v(F + 2 * k), v(F + 2 * k), v(s0)))
            a('v_sub_f32 %s, %s, %s' % (v(F + 2 * k + 1), v(F + 2 * k + 1), v(s0)))
            a('v_cvt_pk_bf16_f32 %s, %s, %s' % (v(t0), v(F + 2 * k), v(F + 2 * k + 1)))
            a('v_lshlrev_b32 %s, 16, %s' % (v(F + 2 * k), v(t0)))
            a('v_and_b32 %s, s100, %s' % (v(F + 2 * k + 1), v(t0)))
            a('v_mul_f32 %s, %s, %s' % (v(F + 2 * k), v(F + 2 * k), v(q0)))
            a('v_mul_f32 %s, %s, %s' % (v(F + 2 * k + 1), v(F + 2 * k + 1), v(q0)))
            a('v_cvt_pk_bf16_f32 %s, %s, %s' % (v(N[k]), v(F + 2 * k), v(F + 2 * k + 1)))
    def ln_addrs(dA, dB, t):
        a('v_lshrrev_b32 %s, 5, v1' % v(t))
        a('s_lshl_b32 s57, s49, 1')
        a('v_add_u32 %s, s57, %s' % (v(t), v(t)))
        a('v_mul_u32_u24 %s, %d, %s' % (v(t), RS, v(t)))
        a('v_bfe_u32 %s, v1, 2, 3' % v(dA))
        a('v_lshl_add_u32 %s, %s, 6, %s' % (v(dA), v(dA), v(t)))
        a('v_and_b32 %s, 1, v1' % v(dB))
        a('v_lshl_add_u32 %s, %s, 5, %s' % (v(dA), v(dB), v(dA)))
        a('v_lshl_add_u32 %s, %s, 2, %s' % (v(t), v(dB), v(t)))
        a('v_bfe_u32 %s, v1, 1, 1' % v(dB))
        a('v_lshl_add_u32 %s, %s, 3, %s' % (v(dA), v(dB), v(dA)))
        a('v_bfe_u32 %s, v1, 1, 2' % v(dB))
        a('v_lshl_add_u32 %s, %s, 4, %s' % (v(t), v(dB), v(t)))
        a('v_bfe_u32 %s, v1, 3, 1' % v(dB))
        a('v_lshl_add_u32 %s, %s, 3, %s' % (v(t), v(dB), v(t)))
        a('v_bfe_u32 %s, v1, 4, 1' % v(dB))
        a('v_lshl_add_u32 %s, %s, 6, %s' % (v(dB), v(dB), v(t)))
    def ln_write(base, dA, dB, N):
        o = base // 8
        a('ds_write_b64 %s, %s offset:%d' % (v(dA), v(N[0], 2), base))
        a('ds_write_b64 %s, %s offset:%d' % (v(dA), v(N[2], 2), base + 16))
        a('ds_write_b64 %s, %s offset:%d' % (v(dA), v(N[4], 2), base + 512))
        a('ds_write_b64 %s, %s offset:%d' % (v(dA), v(N[6], 2), base + 528))
        a('ds_write_b32 %s, %s offset:%d' % (v(dB), v(N[8]), base + 1024))
    def row_addrs(dA, dB):
        a('v_lshrrev_b32 %s, 5, v1' % v(dB))
        a('s_lshl_b32 s57, s49, 1')
        a('v_add_u32 %s, s57, %s' % (v(dB), v(dB)))
        a('v_mul_u32_u24 %s, 1152, %s' % (v(dB), v(dB)))
        a('v_and_b32 %s, 31, v1' % v(dA))
        a('v_lshl_add_u32 %s, %s, 2, %s' % (v(dB), v(dA), v(dB)))
        a('v_mul_u32_u24 %s, 12, %s' % (v(dA), v(dA)))
        a('v_add_u32 %s, %s, %s' % (v(dA), v(dA), v(dB)))

    a('L_start:')
    stamp(0)
    a('s_load_dwordx16 s[4:19], s[0:1], 0')
    a('s_load_dwordx8 s[20:27], s[0:1], 64')
    a('s_load_dwordx2 s[28:29], s[0:1], 96')
    a('s_cmp_ge_u32 s2, 256')
    a('s_cbranch_scc1 L_end')
    a('s_getpc_b64 s[62:63]')
    a('L_pc:')
    a('s_lshr_b32 s51, s2, 3')
    a('s_and_b32 s57, s51, %d\ns_lshl_b32 s57, s57, 11' % (WARM_SLICES - 1))
    a('v_lshl_add_u32 v11, v0, 2, s57')
    a('v_min_u32 v11, L_end-L_pc, v11')
    a('global_load_dword v25, v11, s[62:63]')
    a('v_and_b32 v1, 63, v0')
    a('v_lshrrev_b32 v2, 6, v0')
    a('v_mov_b32 v4, 0\nv_mov_b32 v5, 0')
    a('v_readfirstlane_b32 s48, v2')
    a('ds_write2_b64 v4, v[4:5], v[4:5] offset0:0 offset1:1')
    a('s_and_b32 s50, s2, 7')
    a('s_lshr_b32 s52, s51, 4\ns_lshl_b32 s57, s50, 1\ns_add_u32 s52, s52, s57')
    a('s_and_b32 s53, s51, 15\ns_lshr_b32 s54, s53, 1\ns_and_b32 s55, s53, 1')
    a('s_and_b32 s49, s48, 3')
    a('s_lshl_b32 s56, s54, 4\ns_add_u32 s56, s56, s52\ns_lshl_b32 s56, s56, 20')
    a('s_lshl_b32 s57, s55, 17\ns_add_u32 s56, s56, s57')
    a('s_lshl_b32 s57, s49, 15\ns_add_u32 s56, s56, s57')
    a('s_add_u32 s56, s56, %d' % (3072 * 256))
    a('v_and_b32 v2, 15, v1')
    a('v_lshrrev_b32 v3, 4, v1')
    a('v_lshlrev_b32 v6, 8, v2\nv_lshl_add_u32 v6, v3, 4, v6')
    row_addrs(8, 9)
    a('s_mov_b32 s34, %d\ns_mov_b32 s35, 0x20000' % (1 << 27))
    a('s_mov_b32 s42, 9216\ns_mov_b32 s43, 0x20000')
    a('s_cmp_ge_u32 s48, 4')
    a('s_waitcnt lgkmcnt(0)')
    a('s_barrier')
    a('s_cbranch_scc0 L_vwave')
    a('s_setprio 2')
    a('s_mov_b32 s32, s6\ns_mov_b32 s33, s7')
    def kl(t):
        a('s_add_u32 s57, s56, %d' % (t * 4096))
        for s in range(4):
            a('buffer_load_dwordx4 %s, v6, s[32:35], s57 offen offset:%d %s' % (v(128 + (t * 4 + s) * 4, 4), s * 64, kvflag))
    kl(0)
    a('s_load_dwordx2 s[30:31], s[28:29], 0')
    for t in range(1, 8): kl(t)
    a('s_branch L_kwave')

    a('L_vwave:')
    a('s_setprio 3')
    a('s_mov_b32 s40, s4\ns_mov_b32 s41, s5')
    a('buffer_load_dwordx4 v[16:19], v8, s[40:43], 0 offen')
    a('buffer_load_dwordx4 v[20:23], v8, s[40:43], 0 offen offset:512')
    a('buffer_load_dword v24, v9, s[40:43], 0 offen offset:1024')
    srd(44, 10, 576 * 4096 * 2)
    a('v_lshrrev_b32 v10, 3, v1\nv_lshlrev_b32 v10, 13, v10\nv_bfe_u32 v11, v1, 4, 2\nv_lshlrev_b32 v11, 1, v11\nv_and_b32 v12, 7, v1\nv_xor_b32 v11, v11, v12')
    a('v_lshl_add_u32 v10, v11, 4, v10')
    a('s_lshr_b32 s61, s53, 2\ns_and_b32 s62, s53, 3')
    a('s_mul_i32 s58, s61, %d\ns_lshl_b32 s57, s49, 16\ns_add_u32 s58, s58, s57' % (144 * 8192))
    a('s_lshl_b32 s57, s52, 9\ns_add_u32 s58, s58, s57\ns_lshl_b32 s57, s62, 7\ns_add_u32 s58, s58, s57')
    a('s_lshl_b32 s59, s49, 10\ns_add_u32 s59, s59, %d' % L_WQ)
    for k in range(5):
        if k == 4:
            a('s_cmp_ge_u32 s49, 2')
            a('s_cbranch_scc1 L_wq4')
        a('s_mov_b32 m0, s59')
        a('s_add_u32 s59, s59, 4096')
        a('buffer_load_dwordx4 v10, s[44:47], s58 offen %s lds' % wqflag)
        a('s_add_u32 s58, s58, %d' % (32 * 8192))
    a('L_wq4:')
    a('s_load_dwordx2 s[30:31], s[28:29], 0')
    srd(36, 28, WS_REC)
    a('v_lshlrev_b32 v11, 4, v0\nv_mov_b32 v10, 0x%x\nv_cmp_gt_u32 vcc, %d, v0\nv_cndmask_b32 v11, v10, v11, vcc' % (OOB, CLR_LANES))
    a('v_mov_b32 v12, -1\nv_mov_b32 v13, -1\nv_mov_b32 v14, -1\nv_mov_b32 v15, -1')
    a('s_mul_i32 s60, s2, %d\ns_add_u32 s60, s60, %d' % (CLR_LANES * 16, W_CLR))
    a('buffer_store_dwordx4 v[12:15], v11, s[36:39], s60 offen sc1')
    a('s_mov_b32 s32, s8\ns_mov_b32 s33, s9')
    consts()
    a('v_lshrrev_b32 v10, 5, v1\ns_lshl_b32 s57, s49, 1\nv_add_u32 v10, s57, v10\nv_lshlrev_b32 v10, 5, v10')
    a('v_add_u32 v8, v8, v10\nv_add_u32 v9, v9, v10')
    a('v_bfe_u32 v6, v1, 2, 2\nv_lshl_add_u32 v6, v3, 2, v6')
    a('v_bfe_u32 v7, v6, 1, 2\nv_xor_b32 v7, s49, v7\nv_lshlrev_b32 v7, 5, v7\nv_lshl_add_u32 v6, v6, 7, v7')
    a('v_and_b32 v7, 3, v1\nv_lshl_add_u32 v6, v7, 3, v6')
    a('v_and_b32 v7, 7, v1\nv_mul_u32_u24 v7, %d, v7\nv_lshl_add_u32 v7, v3, 3, v7\ns_mul_i32 s57, s61, 288\nv_add_u32 v7, s57, v7' % RS)
    a('s_waitcnt vmcnt(5)')
    stamp(1)
    layernorm([16, 17, 18, 19, 20, 21, 22, 23, 24], 32, [52, 53, 54, 55, 56, 57, 58, 59, 60], 26)
    a('ds_write_b128 v8, v[52:55] offset:%d' % L_XN)
    a('ds_write_b128 v8, v[56:59] offset:%d' % (L_XN + 512))
    a('ds_write_b32 v9, v60 offset:%d' % (L_XN + 1024))
    a('v_mov_b32 v4, 0\nv_mov_b32 v5, 1')
    a('s_waitcnt vmcnt(0) lgkmcnt(0)')
    stamp(2)
    setexec(1, 0)
    a('ds_add_u32 v4, v5 offset:%d' % (L_FLAG + 0))
    fullexec()
    a('s_add_u32 s30, s30, 1\ns_addc_u32 s31, s31, 0\ns_and_b32 s3, s31, 0xff')
    a('s_getreg_b32 s57, hwreg(HW_REG_XCC_ID, 0, 4)')
    a('s_mul_i32 s58, s57, s57\ns_lshl_b32 s58, s58, 16\ns_lshl_b32 s57, s57, 8\ns_add_u32 s57, s57, s58\ns_add_u32 s57, s57, 1')
    a('v_mov_b32 v8, s57')
    a('s_lshl_b32 s58, s50, 5')
    a('v_mov_b32 v9, s58')
    QA = 64; QB = 64 + 20
    a('v_mov_b32 %s, 0\nv_mov_b32 %s, 0\nv_mov_b32 %s, 0\nv_mov_b32 %s, 0' % (v(QA + 18), v(QA + 19), v(QB + 18), v(QB + 19)))
    a('v_lshlrev_b32 v11, 13, v2\nv_lshl_add_u32 v11, v3, 5, v11')
    a('v_mov_b32 v10, 0x%x\nv_cmp_gt_u32 vcc, 8, v2\nv_cndmask_b32 v11, v10, v11, vcc' % OOB)
    a('s_lshl_b32 s57, s52, 16\ns_lshl_b32 s58, s61, 11\ns_add_u32 s57, s57, s58\ns_lshl_b32 s58, s62, 9\ns_add_u32 s57, s57, s58')
    a('s_lshl_b32 s58, s49, 7\ns_add_u32 s57, s57, s58\ns_add_u32 s59, s57, %d' % W_Q)
    a('v_mov_b32 v33, s30\nv_mov_b32 v35, s30\nv_mov_b32 v37, s30\nv_mov_b32 v39, s30')
    a('v_mov_b32 v42, 0xffffff00')
    lds_spin(L_FLAG + 0, 4)
    for s in range(5):
        a('ds_read_b64_tr_b16 %s, v6 offset:%d' % (v(QA + 4 * s, 2), L_WQ + s * 4096))
        a('ds_read_b64 %s, v7 offset:%d' % (v(QB + 4 * s, 2), L_XN + s * 64))
        if s < 4:
            a('ds_read_b64_tr_b16 %s, v6 offset:%d' % (v(QA + 4 * s + 2, 2), L_WQ + s * 4096 + 2048))
            a('ds_read_b64 %s, v7 offset:%d' % (v(QB + 4 * s + 2, 2), L_XN + s * 64 + 32))
        if s == 2: a('s_waitcnt lgkmcnt(8)')
    a('s_cmp_lg_u32 s48, 0')
    a('s_cbranch_scc1 L_noatom')
    setexec(1, 0)
    a('global_atomic_add v9, v8, s[26:27]')
    fullexec()
    a('L_noatom:')
    for t in range(5):
        a('s_waitcnt lgkmcnt(%d)' % max(0, 14 - 4 * t))
        a('v_mfma_f32_16x16x32_bf16 v[28:31], %s, %s, %s' % (v(QA + 4 * t, 4), v(QB + 4 * t, 4), '0' if t == 0 else 'v[28:31]'))
    for r in range(4): a('v_and_or_b32 %s, %s, v42, s3' % (v(32 + 2 * r), v(28 + r)))
    a('buffer_store_dwordx4 v[32:35], v11, s[36:39], s59 offen sc1')
    a('buffer_store_dwordx4 v[36:39], v11, s[36:39], s59 offen offset:16 sc1')
    stamp(3)
    a('s_setprio 1')
    a('v_lshlrev_b32 v6, 10, v3\nv_lshl_add_u32 v6, v2, 4, v6')
    for blk in range(4):
        for j in range(8):
            if j % 4 == 0: a('s_add_u32 s57, s56, %d' % (blk * 8192 + (j >> 2) * 4096))
            a('buffer_load_dwordx4 %s, v6, s[32:35], s57 offen offset:%d %s' % (v(128 + (blk * 8 + j) * 4, 4), (j & 3) * 256, kvflag))
    a('s_setprio 3')
    stamp(4)
    a('s_lshl_b32 s57, s49, 12\ns_add_u32 s57, s57, %d' % L_P)
    a('v_and_b32 v7, 1, v1\nv_lshlrev_b32 v8, 8, v3\nv_add_u32 v8, s57, v8')
    a('v_lshl_add_u32 v9, v7, 4, v8')
    a('v_add_u32 v8, 32, v8')
    a('v_lshrrev_b32 v10, 1, v2')
    for i in range(8):
        a('v_cmp_eq_u32 vcc, %d, v10' % i)
        a('v_cndmask_b32 %s, v8, v9, vcc' % v(16 + i))
    a('v_lshlrev_b32 v11, 3, v7')
    a('s_barrier')
    stamp(5)
    a('v_mov_b32 v4, 0')
    a('ds_read_b32 v12, v4 offset:%d' % (L_FLAG + 8))
    for w in range(4): a('ds_read_b64 %s, v11 offset:%d' % (v(32 + 2 * w, 2), L_STW + w * 16))
    a('s_lshl_b32 s57, s49, 4')
    a('v_add_u32 v13, s57, v11')
    a('ds_read_b32 v40, v13 offset:%d' % L_STW)
    PB = [96, 64 - 32]
    for i in range(8): a('ds_read_b128 %s, %s' % (v(PB[0] + 4 * i, 4), v(16 + i)))
    a('s_waitcnt lgkmcnt(8)')
    a('v_readfirstlane_b32 s96, v12')
    a('v_max3_f32 v41, v32, v34, v36\nv_max_f32 v41, v41, v38')
    a('s_mov_b32 s57, 0x%x' % LOG2E)
    for w in range(4):
        a('v_sub_f32 %s, %s, v41' % (v(32 + 2 * w), v(32 + 2 * w)))
        a('v_mul_f32 %s, s57, %s' % (v(32 + 2 * w), v(32 + 2 * w)))
        a('v_exp_f32 %s, %s' % (v(32 + 2 * w), v(32 + 2 * w)))
    a('v_sub_f32 v40, v40, v41\nv_mul_f32 v40, s57, v40\nv_exp_f32 v40, v40')
    a('v_mul_f32 v42, v32, v33\nv_fmac_f32 v42, v34, v35\nv_fmac_f32 v42, v36, v37\nv_fmac_f32 v42, v38, v39')
    a('v_rcp_f32 v43, v42')
    a('v_mul_f32 v26, v40, v43')
    a('v_mov_b32 v24, v41\nv_mov_b32 v25, v42')
    a('v_min_u32 v24, -2, v24\nv_min_u32 v25, -2, v25')
    if force_global: a('s_mov_b32 s96, 0')
    a('v_lshlrev_b32 v12, 12, v7')
    a('v_lshl_add_u32 v12, v3, 6, v12')
    a('v_lshl_add_u32 v12, v10, 3, v12')
    a('s_lshl_b32 s58, s50, 14\ns_and_b32 s57, s52, 1\ns_lshl_b32 s57, s57, 13\ns_add_u32 s58, s58, s57')
    a('s_lshl_b32 s57, s55, 3\ns_add_u32 s57, s57, s54')
    a('s_lshl_b32 s59, s57, 8\ns_add_u32 s58, s58, s59\ns_add_u32 s58, s58, %d' % W_O)
    a('s_lshl_b32 s59, s57, 3\ns_lshl_b32 s57, s50, 9\ns_add_u32 s59, s59, s57\ns_and_b32 s57, s52, 1\ns_lshl_b32 s57, s57, 8\ns_add_u32 s59, s59, s57\ns_add_u32 s59, s59, %d' % W_ST)
    a('v_lshlrev_b32 v13, 7, v7\nv_mov_b32 v14, 0x%x\nv_cmp_gt_u32 vcc, 2, v1\nv_cndmask_b32 v13, v14, v13, vcc' % OOB)
    a('v_lshlrev_b32 v14, 4, v1')
    a('s_lshl_b32 s57, s49, 10')
    a('v_add_u32 v15, s57, v14')
    AS = 64
    for blk in range(4):
        cur = PB[blk & 1]; nxt = PB[(blk + 1) & 1]
        VD = 128 + blk * 32
        for jp in range(4):
            a('s_waitcnt vmcnt(%d)' % (32 - blk * 8 - 2 * jp - 2))
            for i in range(8):
                a('v_perm_b32 %s, %s, %s, %s' % (v(AS + 4 * i + jp), v(VD + (2 * jp + 1) * 4 + (i >> 1)), v(VD + 2 * jp * 4 + (i >> 1)), 's99' if i & 1 else 's98'))
        a('s_waitcnt lgkmcnt(0)')
        if blk < 3:
            for i in range(8): a('ds_read_b128 %s, %s offset:%d' % (v(nxt + 4 * i, 4), v(16 + i), (blk + 1) * 1024))
        for i in range(8):
            a('v_mfma_f32_16x16x32_bf16 v[28:31], %s, %s, %s' % (v(AS + 4 * i, 4), v(cur + 4 * i, 4), '0' if (blk == 0 and i == 0) else 'v[28:31]'))
    stamp(6)
    for r in range(4): a('v_mul_f32 %s, v26, %s' % (v(28 + r), v(28 + r)))
    a('ds_write_b128 v15, v[28:31] offset:%d' % L_RED)
    a('v_mov_b32 v5, 1')
    a('s_waitcnt lgkmcnt(0)')
    setexec(1, 0)
    a('ds_add_rtn_u32 v6, v4, v5 offset:%d' % (L_FLAG + 4))
    fullexec()
    a('s_waitcnt lgkmcnt(0)')
    a('v_readfirstlane_b32 s57, v6')
    a('s_cmp_lg_u32 s57, 3')
    a('s_cbranch_scc1 L_fin')
    for w in range(4): a('ds_read_b128 %s, v14 offset:%d' % (v(32 + 4 * w, 4), L_RED + w * 1024))
    a('s_waitcnt lgkmcnt(2)')
    for r in range(4): a('v_add_f32 %s, %s, %s' % (v(32 + r), v(32 + r), v(36 + r)))
    a('s_waitcnt lgkmcnt(0)')
    for r in range(4): a('v_add_f32 %s, %s, %s' % (v(40 + r), v(40 + r), v(44 + r)))
    for r in range(4): a('v_add_f32 %s, %s, %s' % (v(32 + r), v(32 + r), v(40 + r)))
    a('v_cvt_pk_bf16_f32 v36, v32, v33\nv_cvt_pk_bf16_f32 v37, v34, v35')
    a('v_min_u32 v36, -2, v36\nv_min_u32 v37, -2, v37')
    store_lg(['buffer_store_dwordx2 v[36:37], v12, s[36:39], s58 offen', 'buffer_store_dwordx2 v[24:25], v13, s[36:39], s59 offen'])
    stamp(7)
    a('s_branch L_fin')

    a('L_kwave:')
    srd(36, 28, WS_REC)
    consts()
    a('s_setprio 3')
    stamp(1)
    a('s_waitcnt lgkmcnt(0)')
    a('s_add_u32 s30, s30, 1\ns_addc_u32 s31, s31, 0\ns_and_b32 s3, s31, 0xff')
    a('v_and_b32 v7, 31, v1\nv_lshlrev_b32 v7, 4, v7\nv_lshrrev_b32 v8, 5, v1\nv_lshl_add_u32 v7, v8, 11, v7\nv_add_u32 v13, 4096, v7')
    a('s_lshl_b32 s57, s52, 3\ns_add_u32 s57, s57, s54\ns_lshl_b32 s57, s57, 13\ns_lshl_b32 s58, s49, 9\ns_add_u32 s57, s57, s58\ns_add_u32 s58, s57, %d' % W_Q)
    a('v_mov_b32 v14, 0xffffff00')
    a('v_mov_b32 v4, 0\nv_mov_b32 v5, 1')
    a('s_mov_b32 s97, 0')
    a('L_qpoll:')
    a('buffer_load_dwordx4 v[112:115], v7, s[36:39], s58 offen sc1')
    a('buffer_load_dwordx4 v[116:119], v13, s[36:39], s58 offen sc1')
    a('s_add_u32 s97, s97, 1')
    a('s_waitcnt vmcnt(0)')
    a('v_xor_b32 v8, s3, v112\nv_xor_b32 v9, s3, v114\nv_xor_b32 v10, s3, v116\nv_xor_b32 v11, s3, v118')
    a('v_or3_b32 v8, v8, v9, v10\nv_or_b32 v8, v8, v11\nv_and_b32 v8, 0xff, v8')
    a('v_xor_b32 v9, s30, v113\nv_xor_b32 v10, s30, v115\nv_xor_b32 v11, s30, v117\nv_xor_b32 v12, s30, v119')
    a('v_or3_b32 v8, v8, v9, v10\nv_or3_b32 v8, v8, v11, v12')
    a('v_cmp_ne_u32 vcc, 0, v8')
    a('s_cbranch_vccz L_qok')
    a('s_cmp_lt_u32 s97, %d' % POLL_MAX)
    a('s_cbranch_scc1 L_qpoll')
    a('L_qok:')
    for r in (112, 114, 116, 118): a('v_and_b32 %s, v14, %s' % (v(r), v(r)))
    a('v_add_f32 v8, v112, v116\nv_add_f32 v9, v114, v118')
    a('v_mov_b32 v10, v8\nv_mov_b32 v11, v9')
    a('v_permlane32_swap_b32 v8, v10\nv_permlane32_swap_b32 v9, v11')
    a('v_add_f32 v8, v8, v10\nv_add_f32 v9, v9, v11')
    a('v_cvt_pk_bf16_f32 v8, v8, v9')
    a('s_lshl_b32 s57, s49, 7')
    a('v_and_b32 v10, 31, v1\nv_lshl_add_u32 v10, v10, 2, s57')
    a('ds_write_b32 v10, v8 offset:%d' % L_QS)
    a('v_and_b32 v11, 1, v1\nv_lshlrev_b32 v11, 8, v11\nv_lshl_add_u32 v11, v3, 4, v11')
    a('s_waitcnt lgkmcnt(0)')
    setexec(1, 0)
    a('ds_add_u32 v4, v5 offset:%d' % (L_FLAG + 12))
    fullexec()
    lds_spin(L_FLAG + 12, 4)
    stamp(2)
    for s in range(4): a('ds_read_b128 %s, v11 offset:%d' % (v(96 + 4 * s, 4), L_QS + s * 64))
    a('s_waitcnt lgkmcnt(0)')
    S = 64
    for s in range(4):
        for t in range(8):
            a('v_mfma_f32_16x16x32_bf16 %s, %s, %s, %s' % (v(S + 4 * t, 4), v(128 + (t * 4 + s) * 4, 4), v(96 + 4 * s, 4), '0' if s == 0 else v(S + 4 * t, 4)))
    a('s_mov_b32 s57, 0x%x' % SCALE)
    for p in range(16):
        x0, x1 = S + 2 * p, S + 2 * p + 1
        a('v_cvt_pk_bf16_f32 v8, %s, %s' % (v(x0), v(x1)))
        a('v_lshlrev_b32 %s, 16, v8\nv_and_b32 %s, s100, v8' % (v(x0), v(x1)))
        a('v_mul_f32 %s, s57, %s\nv_mul_f32 %s, s57, %s' % (v(x0), v(x0), v(x1), v(x1)))
        a('v_cvt_pk_bf16_f32 v8, %s, %s' % (v(x0), v(x1)))
        a('v_lshlrev_b32 %s, 16, v8\nv_and_b32 %s, s100, v8' % (v(x0), v(x1)))
    a('v_max_f32 v8, %s, %s' % (v(S), v(S + 1)))
    for p in range(1, 16): a('v_max3_f32 v8, %s, %s, v8' % (v(S + 2 * p), v(S + 2 * p + 1)))
    a('v_mov_b32 v9, v8\nv_permlane16_swap_b32 v8, v9\nv_max_f32 v8, v8, v9')
    a('v_mov_b32 v9, v8\nv_permlane32_swap_b32 v8, v9\nv_max_f32 v8, v8, v9')
    a('s_mov_b32 s57, 0x%x' % LOG2E)
    for k in range(32):
        a('v_sub_f32 %s, %s, v8' % (v(S + k), v(S + k)))
        a('v_mul_f32 %s, s57, %s' % (v(S + k), v(S + k)))
        a('v_exp_f32 %s, %s' % (v(S + k), v(S + k)))
    a('v_add_f32 v9, %s, %s' % (v(S), v(S + 1)))
    a('v_add_f32 v10, %s, %s' % (v(S + 2), v(S + 3)))
    for k in range(4, 32, 2):
        a('v_add_f32 v9, v9, %s\nv_add_f32 v10, v10, %s' % (v(S + k), v(S + k + 1)))
    a('v_add_f32 v9, v9, v10')
    a('v_mov_b32 v10, v9\nv_permlane16_swap_b32 v9, v10\nv_add_f32 v9, v9, v10')
    a('v_mov_b32 v10, v9\nv_permlane32_swap_b32 v9, v10\nv_add_f32 v9, v9, v10')
    for p in range(16): a('v_cvt_pk_bf16_f32 %s, %s, %s' % (v(96 + p), v(S + 2 * p), v(S + 2 * p + 1)))
    a('s_lshl_b32 s57, s49, 12')
    a('v_lshl_add_u32 v10, v1, 4, s57')
    a('v_mov_b32 v12, 0\nv_mov_b32 v13, 0\nv_mov_b32 v14, 0\nv_mov_b32 v15, 0')
    a('s_lshl_b32 s57, s49, 4')
    a('v_lshl_add_u32 v11, v1, 3, s57')
    setexec(0x00030003, 0x00030003)
    for blk in range(4): a('ds_write_b128 v10, %s offset:%d' % (v(96 + 4 * blk, 4), L_P + blk * 1024))
    setexec(0x00040004, 0x00040004)
    for blk in range(4): a('ds_write_b128 v10, v[12:15] offset:%d' % (L_P + blk * 1024))
    setexec(3, 0)
    a('ds_write_b64 v11, v[8:9] offset:%d' % L_STW)
    fullexec()
    stamp(3)
    a('s_cmp_lg_u32 s49, 0')
    a('s_cbranch_scc1 L_kb1')
    srd(40, 26, 256)
    a('v_lshlrev_b32 v10, 5, v1')
    a('s_getreg_b32 s57, hwreg(HW_REG_XCC_ID, 0, 4)')
    a('s_mul_i32 s58, s57, s57\ns_lshl_b32 s58, s58, 16\ns_lshl_b32 s57, s57, 8\ns_add_u32 s57, s57, s58\ns_add_u32 s57, s57, 1\ns_lshl_b32 s58, s57, 5')
    a('s_mov_b32 s97, 0')
    a('L_cpoll:')
    a('buffer_load_dword v11, v10, s[40:43], 0 offen sc1')
    a('s_add_u32 s97, s97, 1')
    a('s_waitcnt vmcnt(0)')
    a('v_and_b32 v12, 63, v11')
    a('v_cmp_ne_u32 vcc, 32, v12')
    a('s_and_b32 s57, vcc_lo, 0xff')
    a('s_cbranch_scc0 L_cok')
    a('s_cmp_lt_u32 s97, %d' % POLL_MAX)
    a('s_cbranch_scc1 L_cpoll')
    a('L_cok:')
    a('v_readlane_b32 s57, v11, s50')
    a('s_cmp_eq_u32 s57, s58')
    a('s_cselect_b32 s57, 1, 0')
    a('v_mov_b32 v11, s57\nv_mov_b32 v12, 0')
    a('ds_write_b32 v12, v11 offset:%d' % (L_FLAG + 8))
    a('L_kb1:')
    stamp(4)
    a('s_waitcnt lgkmcnt(0)')
    a('s_barrier')
    stamp(5)
    a('s_setprio 0')
    a('v_mov_b32 v4, 0')
    a('ds_read_b32 v12, v4 offset:%d' % (L_FLAG + 8))
    a('s_cmp_lt_u32 s51, 18')
    a('s_cbranch_scc1 L_ffn')
    a('s_cmp_ge_u32 s51, 27')
    a('s_cbranch_scc1 L_fin')

    a('s_sub_u32 s61, s51, 18')
    srd(40, 12, 4096 * 1152)
    srd(44, 4, 9216)
    a('v_lshrrev_b32 v6, 3, v1\nv_mul_u32_u24 v6, 1152, v6')
    a('v_bfe_u32 v7, v1, 4, 1\nv_lshlrev_b32 v7, 1, v7\nv_and_b32 v8, 7, v1\nv_xor_b32 v7, v7, v8')
    a('v_lshl_add_u32 v6, v7, 4, v6')
    a('s_lshl_b32 s57, s50, 2\ns_add_u32 s57, s57, s49\ns_mul_i32 s58, s57, %d' % (128 * 1152))
    a('s_lshl_b32 s57, s61, 7\ns_add_u32 s58, s58, s57')
    a('s_mul_i32 s59, s49, %d\ns_add_u32 s59, s59, %d' % (16 * 1088, L_W))
    a('s_mov_b32 s60, s59')
    for k in range(16):
        a('s_mov_b32 m0, s59')
        a('s_add_u32 s59, s59, 1088')
        a('buffer_load_dwordx4 v6, s[40:43], s58 offen %s lds' % wflag)
        a('s_add_u32 s58, s58, %d' % (8 * 1152))
    a('v_bfe_u32 v7, v1, 4, 1\ns_lshl_b32 s57, s49, 1\nv_add_u32 v7, s57, v7\nv_mul_u32_u24 v7, 1152, v7')
    a('v_lshl_add_u32 v7, v2, 3, v7')
    a('s_lshl_b32 s57, s61, 7')
    a('buffer_load_dwordx2 v[20:21], v7, s[44:47], s57 offen')
    a('s_setprio 3')
    a('v_mov_b32 v8, 0x%x\nv_cmp_gt_u32 vcc, 32, v1\nv_cndmask_b32 v22, v8, v7, vcc' % OOB)
    a('s_mul_i32 s62, s50, 9216\ns_add_u32 s62, s62, s57\ns_add_u32 s62, s62, %d' % W_H)
    a('v_bfe_u32 v8, v1, 2, 2\nv_mul_u32_u24 v8, 1088, v8\nv_lshl_add_u32 v8, v3, 8, v8')
    a('v_and_b32 v9, 3, v1\nv_lshl_add_u32 v8, v9, 3, v8\nv_add_u32 v8, s60, v8')
    a('v_and_b32 v9, 1, v3\nv_lshl_add_u32 v10, v9, 5, v8')
    a('v_xor_b32 v9, 1, v9\nv_lshl_add_u32 v11, v9, 5, v8')
    a('v_lshlrev_b32 v13, 8, v2\nv_lshl_add_u32 v13, v3, 4, v13')
    a('v_lshlrev_b32 v14, 3, v2')
    a('s_lshl_b32 s58, s50, 14\ns_lshl_b32 s57, s49, 12\ns_add_u32 s58, s58, s57\ns_add_u32 s58, s58, %d' % W_O)
    a('s_lshl_b32 s59, s50, 9\ns_lshl_b32 s57, s49, 7\ns_add_u32 s59, s59, s57\ns_add_u32 s59, s59, %d' % W_ST)
    a('v_mul_u32_u24 v15, 272, v2\nv_lshl_add_u32 v15, v3, 4, v15\ns_mul_i32 s57, s49, 2176\nv_add_u32 v15, s57, v15')
    a('v_bfe_u32 v16, v1, 4, 1\ns_lshl_b32 s57, s49, 1\nv_add_u32 v16, s57, v16\nv_mul_u32_u24 v16, 272, v16\nv_lshl_add_u32 v16, v2, 4, v16')
    a('v_lshrrev_b32 v17, 5, v1\nv_mul_u32_u24 v17, 4352, v17\nv_add_u32 v16, v16, v17')
    a('v_and_b32 v17, 31, v1\nv_lshlrev_b32 v17, 4, v17')
    a('v_mov_b32 v8, 0x%x\nv_cmp_gt_u32 vcc, 32, v1\nv_cndmask_b32 v18, v8, v17, vcc' % OOB)
    a('v_lshrrev_b32 v19, 5, v1\nv_lshl_add_u32 v19, v19, 13, v17')
    a('s_lshl_b32 s63, s61, 14\ns_lshl_b32 s57, s49, 9\ns_add_u32 s63, s63, s57\ns_add_u32 s63, s63, %d' % W_P1)
    a('s_lshl_b32 s57, s50, 11\ns_add_u32 s60, s63, s57')
    a('s_waitcnt lgkmcnt(0)')
    a('v_readfirstlane_b32 s96, v12')
    if force_global: a('s_mov_b32 s96, 0')
    a('s_waitcnt vmcnt(0)')
    stamp(6)
    WF = 128
    for s in range(4):
        for nt in range(4):
            ad = 10 if nt % 2 == 0 else 11
            off = s * 4 * 1088 + (nt >> 1) * 64
            a('ds_read_b64_tr_b16 %s, %s offset:%d' % (v(WF + (s * 4 + nt) * 4, 2), v(ad), off))
            a('ds_read_b64_tr_b16 %s, %s offset:%d' % (v(WF + (s * 4 + nt) * 4 + 2, 2), v(ad), off + 128))
    a('v_lshlrev_b32 v24, 16, v20\nv_and_b32 v25, s100, v20\nv_lshlrev_b32 v26, 16, v21\nv_and_b32 v27, s100, v21')
    OF = 64
    poll(['buffer_load_dwordx2 v[28:29], v14, s[36:39], s59 offen sc1'] +
         ['buffer_load_dwordx4 %s, v13, s[36:39], s58 offen offset:%d sc1' % (v(OF + 4 * s, 4), s * 64) for s in range(4)],
         [[28, 29]] + [range(OF + 4 * s, OF + 4 * s + 4) for s in range(4)], 8)
    stamp(7)
    a('s_waitcnt lgkmcnt(0)')
    DD = 96
    for s in range(4):
        for nt in range(4):
            a('v_mfma_f32_16x16x32_bf16 %s, %s, %s, %s' % (v(DD + 4 * nt, 4), v(WF + (s * 4 + nt) * 4, 4), v(OF + 4 * s, 4), '0' if s == 0 else v(DD + 4 * nt, 4)))
    a('v_max_f32_dpp v30, v28, v28 row_ror:8 row_mask:0xf bank_mask:0xf')
    a('s_mov_b32 s57, 0x%x' % LOG2E)
    a('v_sub_f32 v30, v28, v30\nv_mul_f32 v30, s57, v30\nv_exp_f32 v30, v30')
    a('v_mul_f32 v30, v30, v29')
    a('v_add_f32_dpp v31, v30, v30 row_ror:8 row_mask:0xf bank_mask:0xf')
    a('v_rcp_f32 v31, v31')
    a('v_mul_f32 v30, v30, v31')
    for k in range(16): a('v_mul_f32 %s, v30, %s' % (v(DD + k), v(DD + k)))
    for k in range(16): a('v_add_f32_dpp %s, %s, %s row_ror:8 row_mask:0xf bank_mask:0xf' % (v(DD + k), v(DD + k), v(DD + k)))
    setexec(0x00ff00ff, 0x00ff00ff)
    for nt in range(4): a('ds_write_b128 v15, %s offset:%d' % (v(DD + 4 * nt, 4), L_RW + nt * 64))
    fullexec()
    a('s_waitcnt lgkmcnt(0)')
    a('s_barrier')
    a('ds_read_b128 v[32:35], v16 offset:%d' % L_RW)
    a('ds_read_b128 v[36:39], v16 offset:%d' % (L_RW + 2176))
    a('s_waitcnt lgkmcnt(0)')
    for r in range(4): a('v_add_f32 %s, %s, %s' % (v(32 + r), v(32 + r), v(36 + r)))
    for r in range(4): a('v_mov_b32 %s, %s' % (v(36 + r), v(32 + r)))
    for r in range(4): a('v_permlane32_swap_b32 %s, %s' % (v(32 + r), v(36 + r)))
    for r in range(4): a('v_add_f32 %s, %s, %s' % (v(32 + r), v(32 + r), v(36 + r)))
    for r in range(4): a('v_min_u32 %s, -2, %s' % (v(32 + r), v(32 + r)))
    a('buffer_store_dwordx4 v[32:35], v18, s[36:39], s60 offen sc1')
    stamp(8)
    poll(['buffer_load_dwordx4 %s, v19, s[36:39], s63 offen offset:%d sc1' % (v(64 + 4 * u, 4), u * 2048) if u < 2 else
          'buffer_load_dwordx4 %s, v19, s[36:39], s63 offen offset:%d sc1' % (v(64 + 4 * u, 4), u * 2048) for u in range(2)] +
         ['buffer_load_dwordx4 %s, v23, s[36:39], s63 offen offset:%d sc1' % (v(72 + 4 * u, 4), u * 2048) for u in range(2)],
         [range(64 + 4 * u, 68 + 4 * u) for u in range(4)], 8, ) if False else None
    a('v_add_u32 v23, 4096, v19')
    poll(['buffer_load_dwordx4 %s, v19, s[36:39], s63 offen offset:%d sc1' % (v(64 + 4 * u, 4), u * 2048) for u in range(2)] +
         ['buffer_load_dwordx4 %s, v23, s[36:39], s63 offen offset:%d sc1' % (v(72 + 4 * u, 4), u * 2048) for u in range(2)],
         [range(64 + 4 * u, 68 + 4 * u) for u in range(4)], 8)
    stamp(9)
    for r in range(4): a('v_add_f32 %s, %s, %s' % (v(64 + r), v(64 + r), v(68 + r)))
    for r in range(4): a('v_add_f32 %s, %s, %s' % (v(72 + r), v(72 + r), v(76 + r)))
    for r in range(4): a('v_add_f32 %s, %s, %s' % (v(64 + r), v(64 + r), v(72 + r)))
    for r in range(4): a('v_mov_b32 %s, %s' % (v(68 + r), v(64 + r)))
    for r in range(4): a('v_permlane32_swap_b32 %s, %s' % (v(64 + r), v(68 + r)))
    for r in range(4): a('v_add_f32 %s, %s, %s' % (v(64 + r), v(64 + r), v(68 + r)))
    a('v_cvt_pk_bf16_f32 v68, v64, v65\nv_cvt_pk_bf16_f32 v69, v66, v67')
    a('v_lshlrev_b32 v64, 16, v68\nv_and_b32 v65, s100, v68\nv_lshlrev_b32 v66, 16, v69\nv_and_b32 v67, s100, v69')
    for r in range(4): a('v_add_f32 %s, %s, %s' % (v(64 + r), v(64 + r), v(24 + r)))
    a('v_cvt_pk_bf16_f32 v68, v64, v65\nv_cvt_pk_bf16_f32 v69, v66, v67')
    a('v_min_u32 v68, -2, v68\nv_min_u32 v69, -2, v69')
    store_lg(['buffer_store_dwordx2 v[68:69], v22, s[36:39], s62 offen'])
    stamp(10)
    a('s_branch L_fin')

    a('L_ffn:')
    srd(40, 18, 576 * 9216)
    srd(44, 20, 576 * 9216)
    a('v_lshrrev_b32 v6, 2, v1\nv_mul_u32_u24 v6, 9216, v6')
    a('v_bfe_u32 v8, v1, 4, 1\nv_and_b32 v9, 3, v1\nv_xor_b32 v8, v8, v9\nv_lshl_add_u32 v6, v8, 4, v6')
    a('v_lshrrev_b32 v7, 3, v1\nv_mul_u32_u24 v7, 1152, v7\nv_bfe_u32 v8, v1, 4, 1\nv_lshlrev_b32 v8, 1, v8\nv_and_b32 v9, 7, v1\nv_xor_b32 v8, v8, v9')
    a('s_and_b32 s57, s49, 1\ns_lshl_b32 s57, s57, 2\nv_xor_b32 v8, s57, v8\nv_xor_b32 v9, 4, v8')
    a('v_lshl_add_u32 v13, v9, 4, v7\nv_lshl_add_u32 v7, v8, 4, v7')
    a('s_cmp_ge_u32 s51, 9\ns_cselect_b32 s63, 1, 0\ns_mul_i32 s57, s63, 9\ns_sub_u32 s101, s51, s57')
    a('s_mul_i32 s57, s50, 18\ns_add_u32 s57, s57, s51\ns_lshl_b32 s57, s57, 6')
    a('s_mul_i32 s58, s49, %d\ns_add_u32 s58, s58, s57' % (144 * 9216))
    a('s_mul_i32 s59, s49, 9216\ns_add_u32 s59, s59, %d' % L_G)
    for k in range(9):
        a('s_mov_b32 m0, s59')
        a('s_add_u32 s60, s59, %d' % (L_U - L_G))
        a('buffer_load_dwordx4 v6, s[40:43], s58 offen %s lds' % wflag)
        a('s_mov_b32 m0, s60')
        a('s_add_u32 s59, s59, 1024')
        a('buffer_load_dwordx4 v6, s[44:47], s58 offen %s lds' % wflag)
        a('s_add_u32 s58, s58, %d' % (16 * 9216))
    srd(40, 22, 4608 * 1152)
    a('s_mul_i32 s58, s50, 576\ns_mul_i32 s57, s63, 288\ns_add_u32 s58, s58, s57\ns_mul_i32 s57, s49, 72\ns_add_u32 s58, s58, s57\ns_mul_i32 s58, s58, 1152')
    a('s_lshl_b32 s57, s101, 7\ns_add_u32 s58, s58, s57')
    a('s_mul_i32 s59, s49, 9216\ns_add_u32 s59, s59, %d' % L_D)
    for k in range(9):
        a('s_mov_b32 m0, s59')
        a('s_add_u32 s59, s59, 1024')
        a('buffer_load_dwordx4 %s, s[40:43], s58 offen %s lds' % ('v13' if k & 1 else 'v7', wflag))
        a('s_add_u32 s58, s58, %d' % (8 * 1152))
    srd(44, 16, 1152)
    a('v_and_b32 v8, 31, v1\nv_lshlrev_b32 v9, 2, v8\nv_lshlrev_b32 v8, 4, v8')
    a('buffer_load_dwordx4 v[40:43], v8, s[44:47], 0 offen')
    a('buffer_load_dwordx4 v[44:47], v8, s[44:47], 0 offen offset:512')
    a('buffer_load_dword v48, v9, s[44:47], 0 offen offset:1024')
    a('s_setprio 3')
    srd(44, 24, 9216)
    row_addrs(6, 7)
    ln_addrs(8, 9, 10)
    a('s_mul_i32 s58, s50, 9216\ns_add_u32 s59, s58, %d\ns_add_u32 s58, s58, %d' % (W_A, W_H))
    a('v_bfe_u32 v10, v1, 2, 2\nv_lshl_add_u32 v10, v3, 2, v10\nv_lshlrev_b32 v10, 6, v10')
    a('v_and_b32 v11, 1, v3\nv_xor_b32 v11, s49, v11\nv_lshlrev_b32 v11, 4, v11\nv_and_b32 v13, 1, v1\nv_lshl_add_u32 v11, v13, 3, v11')
    a('v_add_u32 v10, v10, v11')
    a('v_bfe_u32 v13, v1, 1, 1')
    a('v_mul_u32_u24 v14, %d, v13\nv_add_u32 v10, v10, v14\nv_add_u32 v10, %d, v10' % (L_U - L_G, L_G))
    a('v_bfe_u32 v14, v1, 2, 2\nv_lshl_add_u32 v14, v3, 3, v14\nv_lshlrev_b32 v11, 7, v14')
    a('v_bfe_u32 v13, v1, 3, 2\nv_xor_b32 v13, s49, v13\nv_lshl_add_u32 v11, v13, 5, v11')
    a('v_and_b32 v13, 3, v1\nv_lshl_add_u32 v11, v13, 3, v11\nv_add_u32 v11, %d, v11' % L_D)
    a('v_and_b32 v13, 7, v1\nv_mul_u32_u24 v14, %d, v13\nv_lshl_add_u32 v14, v3, 4, v14' % RS)
    a('v_mul_u32_u24 v15, 1152, v13\nv_lshl_add_u32 v15, v3, 3, v15')
    a('v_and_b32 v16, 0x28, v1\nv_mov_b32 v17, 0x%x\nv_cmp_eq_u32 vcc, 0, v16\nv_cndmask_b32 v15, v17, v15, vcc' % OOB)
    a('s_lshl_b32 s57, s51, 6\ns_add_u32 s60, s59, s57\ns_lshl_b32 s57, s49, 4\ns_add_u32 s60, s60, s57')
    a('v_mul_u32_u24 v16, 1152, v13\nv_lshl_add_u32 v16, v3, 4, v16')
    a('s_mul_i32 s57, s63, 576\ns_add_u32 s59, s59, s57')
    a('v_lshlrev_b32 v18, 12, v13\nv_lshl_add_u32 v18, v3, 4, v18\nv_cmp_gt_u32 vcc, 8, v2\nv_cndmask_b32 v18, v17, v18, vcc')
    a('s_lshl_b32 s62, s101, 15\ns_lshl_b32 s57, s50, 9\ns_add_u32 s62, s62, s57\ns_lshl_b32 s57, s63, 8\ns_add_u32 s62, s62, s57')
    a('s_lshl_b32 s57, s49, 6\ns_add_u32 s62, s62, s57\ns_add_u32 s62, s62, %d' % W_P2)
    a('s_lshr_b32 s61, s51, 1\ns_lshl_b32 s61, s61, 15\ns_lshl_b32 s57, s50, 12\ns_add_u32 s61, s61, s57\ns_and_b32 s57, s51, 1\ns_lshl_b32 s57, s57, 7\ns_add_u32 s61, s61, s57\ns_add_u32 s61, s61, %d' % W_P2)
    a('s_waitcnt lgkmcnt(0)')
    a('v_readfirstlane_b32 s96, v12')
    if force_global: a('s_mov_b32 s96, 0')
    a('s_waitcnt vmcnt(0)')
    a('s_barrier')
    stamp(6)
    GF = 128; DF = 200
    for s in range(18):
        a('ds_read_b64_tr_b16 %s, v10 offset:%d' % (v(GF + 4 * s, 2), s * 2048))
        a('ds_read_b64_tr_b16 %s, v10 offset:%d' % (v(GF + 4 * s + 2, 2), s * 2048 + 1024))
    for s in range(9):
        a('ds_read_b64_tr_b16 %s, v11 offset:%d' % (v(DF + 4 * s, 2), s * 4096))
        a('ds_read_b64_tr_b16 %s, v11 offset:%d' % (v(DF + 4 * s + 2, 2), s * 4096 + 512))
    poll(['buffer_load_dwordx4 v[20:23], v6, s[36:39], s58 offen sc1',
          'buffer_load_dwordx4 v[24:27], v6, s[36:39], s58 offen offset:512 sc1',
          'buffer_load_dword v28, v7, s[36:39], s58 offen offset:1024 sc1'],
         [range(20, 24), range(24, 28), [28]], 19)
    stamp(7)
    N = [52, 53, 54, 55, 56, 57, 58, 59, 60]
    layernorm([20, 21, 22, 23, 24, 25, 26, 27, 28], 64, N, 30)
    ln_write(L_HN, 8, 9, N)
    ln_write(L_H, 8, 9, [20, 21, 22, 23, 24, 25, 26, 27, 28])
    a('s_waitcnt lgkmcnt(0)')
    a('s_barrier')
    stamp(8)
    HF = 56
    for s in range(18):
        a('ds_read_b128 %s, v14 offset:%d' % (v(HF + 4 * s, 4), L_HN + s * 64)) if False else None
    a('v_dot2_f32_bf16 v36, v52, v40, 0')
    for k in range(1, 9): a('v_dot2_f32_bf16 v36, %s, %s, v36' % (v(N[k]), v(40 + k)))
    HF = 64
    def hf(s): return HF + 4 * s if s < 16 else 40 + 4 * (s - 16)
    for s in range(18):
        a('ds_read_b128 %s, v14 offset:%d' % (v(hf(s), 4), L_HN + s * 64))
        if s >= 6:
            t = s - 6
            a('s_waitcnt lgkmcnt(6)')
            a('v_mfma_f32_16x16x32_bf16 v[32:35], %s, %s, %s' % (v(GF + 4 * t, 4), v(hf(t), 4), '0' if t == 0 else 'v[32:35]'))
    for t in range(12, 18):
        a('s_waitcnt lgkmcnt(%d)' % (17 - t))
        a('v_mfma_f32_16x16x32_bf16 v[32:35], %s, %s, v[32:35]' % (v(GF + 4 * t, 4), v(hf(t), 4)))
    for r in (8, 4, 2, 1):
        a('v_add_f32_dpp v36, v36, v36 row_ror:%d row_mask:0xf bank_mask:0xf' % r)
    a('v_mov_b32 v37, v36\nv_permlane16_swap_b32 v36, v37\nv_add_f32 v36, v36, v37')
    a('v_cvt_pk_bf16_f32 v48, v32, v33\nv_cvt_pk_bf16_f32 v49, v34, v35')
    a('v_mov_b32 v50, v48\nv_mov_b32 v51, v49')
    a('v_permlane32_swap_b32 v48, v50\nv_permlane32_swap_b32 v49, v51')
    a('v_lshlrev_b32 v52, 16, v48\nv_and_b32 v53, s100, v48\nv_lshlrev_b32 v54, 16, v49\nv_and_b32 v55, s100, v49')
    a('s_mov_b32 s57, 0x%x' % (LOG2E | 0x80000000))
    for r in range(4): a('v_mul_f32 %s, s57, %s' % (v(56 + r), v(52 + r)))
    for r in range(4): a('v_exp_f32 %s, %s' % (v(56 + r), v(56 + r)))
    for r in range(4): a('v_add_f32 %s, 1.0, %s' % (v(56 + r), v(56 + r)))
    for r in range(4): a('v_rcp_f32 %s, %s' % (v(56 + r), v(56 + r)))
    for r in range(4): a('v_mul_f32 %s, %s, %s' % (v(52 + r), v(52 + r), v(56 + r)))
    a('v_cvt_pk_bf16_f32 v48, v52, v53\nv_cvt_pk_bf16_f32 v49, v54, v55')
    a('v_lshlrev_b32 v52, 16, v48\nv_and_b32 v53, s100, v48\nv_lshlrev_b32 v54, 16, v49\nv_and_b32 v55, s100, v49')
    a('v_lshlrev_b32 v56, 16, v50\nv_and_b32 v57, s100, v50\nv_lshlrev_b32 v58, 16, v51\nv_and_b32 v59, s100, v51')
    for r in range(4): a('v_mul_f32 %s, %s, %s' % (v(52 + r), v(52 + r), v(56 + r)))
    a('v_cvt_pk_bf16_f32 v48, v52, v53\nv_cvt_pk_bf16_f32 v49, v54, v55')
    a('v_min_u32 v48, -2, v48\nv_min_u32 v49, -2, v49')
    store_lg(['buffer_store_dwordx2 v[48:49], v15, s[36:39], s60 offen'])
    stamp(9)
    bf16r(36, 36)
    a('v_mul_f32 v36, s57, v36\nv_exp_f32 v36, v36\nv_add_f32 v36, 1.0, v36\nv_rcp_f32 v36, v36')
    bf16r(36, 36)
    a('s_lshl_b32 s57, s49, 3')
    a('v_lshrrev_b32 v37, 5, v1\nv_lshl_add_u32 v37, v37, 2, s57')
    a('ds_write_b32 v37, v36 offset:%d' % L_STW)
    AF = 64
    poll(['buffer_load_dwordx4 %s, v16, s[36:39], s59 offen offset:%d sc1' % (v(AF + 4 * s, 4), s * 64) for s in range(9)],
         [range(AF + 4 * s, AF + 4 * s + 4) for s in range(9)], 19)
    stamp(10)
    for s in range(9):
        a('v_mfma_f32_16x16x32_bf16 v[32:35], %s, %s, %s' % (v(DF + 4 * s, 4), v(AF + 4 * s, 4), '0' if s == 0 else 'v[32:35]'))
    for r in range(4): a('v_min_u32 %s, -2, %s' % (v(32 + r), v(32 + r)))
    a('buffer_store_dwordx4 v[32:35], v18, s[36:39], s62 offen sc1')
    stamp(11)
    a('s_waitcnt lgkmcnt(0)')
    a('s_barrier')
    a('s_cmp_lg_u32 s49, 0')
    a('s_cbranch_scc1 L_fin')
    a('v_lshrrev_b32 v6, 3, v1\nv_lshlrev_b32 v6, 9, v6\nv_and_b32 v7, 7, v1\nv_lshl_add_u32 v6, v7, 4, v6')
    a('s_mul_i32 s57, s50, %d\ns_lshl_b32 s58, s51, 6\ns_add_u32 s57, s57, s58' % RS)
    a('v_and_b32 v7, 3, v1\nv_lshlrev_b32 v7, 4, v7\nv_bfe_u32 v8, v1, 2, 1\nv_lshl_add_u32 v7, v8, 3, v7\nv_add_u32 v7, s57, v7')
    a('ds_read_b64 v[20:21], v7 offset:%d' % L_H)
    a('ds_read_b64 v[22:23], v7 offset:%d' % L_HN)
    a('s_lshl_b32 s57, s50, 2\nv_mov_b32 v8, s57')
    a('ds_read_b32 v24, v8 offset:%d' % L_STW)
    a('v_lshlrev_b32 v9, 3, v1\nv_mov_b32 v10, 0x%x\nv_cmp_gt_u32 vcc, 8, v1\nv_cndmask_b32 v9, v10, v9, vcc' % OOB)
    a('s_mul_i32 s58, s50, 1152\ns_lshl_b32 s57, s51, 6\ns_add_u32 s58, s58, s57')
    a('s_waitcnt lgkmcnt(0)')
    a('v_lshlrev_b32 v40, 16, v20\nv_and_b32 v41, s100, v20\nv_lshlrev_b32 v42, 16, v21\nv_and_b32 v43, s100, v21')
    a('v_lshlrev_b32 v44, 16, v22\nv_and_b32 v45, s100, v22\nv_lshlrev_b32 v46, 16, v23\nv_and_b32 v47, s100, v23')
    poll(['buffer_load_dwordx4 v[32:35], v6, s[36:39], s61 offen sc1', 'buffer_load_dwordx4 v[36:39], v6, s[36:39], s61 offen offset:256 sc1'], [range(32, 36), range(36, 40)], 19)
    stamp(12)
    for r in range(4): a('v_add_f32 %s, %s, %s' % (v(32 + r), v(32 + r), v(36 + r)))
    for r in range(4): a('v_add_f32_dpp %s, %s, %s row_ror:8 row_mask:0xf bank_mask:0xf' % (v(32 + r), v(32 + r), v(32 + r)))
    for r in range(4): a('v_mov_b32 %s, %s' % (v(36 + r), v(32 + r)))
    for r in range(4): a('v_permlane16_swap_b32 %s, %s' % (v(32 + r), v(36 + r)))
    for r in range(4): a('v_add_f32 %s, %s, %s' % (v(32 + r), v(32 + r), v(36 + r)))
    for r in range(4): a('v_mov_b32 %s, %s' % (v(36 + r), v(32 + r)))
    for r in range(4): a('v_permlane32_swap_b32 %s, %s' % (v(32 + r), v(36 + r)))
    for r in range(4): a('v_add_f32 %s, %s, %s' % (v(32 + r), v(32 + r), v(36 + r)))
    def rnd4(b):
        a('v_cvt_pk_bf16_f32 v36, %s, %s\nv_cvt_pk_bf16_f32 v37, %s, %s' % (v(b), v(b + 1), v(b + 2), v(b + 3)))
        a('v_lshlrev_b32 %s, 16, v36\nv_and_b32 %s, s100, v36\nv_lshlrev_b32 %s, 16, v37\nv_and_b32 %s, s100, v37' % (v(b), v(b + 1), v(b + 2), v(b + 3)))
    rnd4(32)
    for r in range(4): a('v_mul_f32 %s, v24, %s' % (v(32 + r), v(32 + r)))
    rnd4(32)
    for r in range(4): a('v_fmac_f32 %s, 0, %s' % (v(32 + r), v(44 + r)))
    for r in range(4): a('v_add_f32 %s, %s, %s' % (v(32 + r), v(44 + r), v(32 + r)))
    rnd4(32)
    for r in range(4): a('v_add_f32 %s, %s, %s' % (v(32 + r), v(40 + r), v(32 + r)))
    a('v_cvt_pk_bf16_f32 v36, v32, v33\nv_cvt_pk_bf16_f32 v37, v34, v35')
    a('buffer_store_dwordx2 v[36:37], v9, s[44:47], s58 offen')
    stamp(13)
    a('s_cmp_lg_u32 s2, 0')
    a('s_cbranch_scc1 L_fin')
    a('v_mov_b32 v36, s30\nv_mov_b32 v37, s31\nv_mov_b32 v9, 0')
    setexec(1, 0)
    a('buffer_store_dwordx2 v[36:37], v9, s[36:39], 0 offen sc1')
    fullexec()
    a('L_fin:')
    if stamps:
        a('s_and_b32 s57, s48, 3')
        a('s_cmp_lg_u32 s57, 0')
        a('s_cbranch_scc1 L_end')
        a('s_waitcnt lgkmcnt(0)')
        a('s_lshl_b32 s57, s2, 8\ns_lshl_b32 s58, s48, 5\ns_add_u32 s57, s57, s58\ns_add_u32 s57, s57, %d' % TSOFF)
        a('s_add_u32 s28, s28, s57\ns_addc_u32 s29, s29, 0')
        a('v_mov_b32 v1, 0')
        for i in range(16):
            a('v_mov_b32 v2, s%d\nv_mov_b32 v3, s%d' % (64 + 2 * i, 65 + 2 * i))
            a('global_store_dwordx2 v1, v[2:3], s[28:29] offset:%d' % (8 * i))
    a('L_end:')
    a.lines = insert_waits(a.lines)
    return kernel_file([(NAME + '_kernel', a.text(), 256, 102, 256)], [(NAME + '_kernel', 256, 512, LDS_BYTES)])

if __name__ == '__main__':
    open('k_main.s', 'w').write(gen())
    open('k_st.s', 'w').write(gen(stamps=True))
    open('k_st_glob.s', 'w').write(gen(stamps=True, force_global=True))
```

```python
import sys
from asmlib import *
from hazard import insert_waits

L_FLAG = 0; L_STW = 64; L_QS = 128; L_RED = 2304; L_P = 6400
RS = 1184
L_HN = L_P; L_H = L_P + 8 * RS; L_RW = L_P
L_W = 25600
L_G = L_W; L_U = L_G + 36864 + 32; L_D = L_W + 73984;
L_WQ = L_W; L_XN = L_W + 18432
LDS_BYTES = 136704
W_Q = 0x200000
W_CLR = 0x80000
W_O = W_CLR; W_ST = W_O + 131072; W_P1 = W_ST + 4096; W_H = W_P1 + 147456; W_A = W_H + 73728; W_P2 = W_A + 73728
CLR_LANES = 177
assert W_P2 + 294912 <= W_CLR + 256 * CLR_LANES * 16
WS_REC = 0x300000
OOB = 0x7ffffff0
LOG2E = 0x3fb8aa3b
SCALE = 0x3db504f3
POLL_MAX = 1 << 14
WARM_SLICES = 8

def v(a, n=1): return 'v%d' % a if n == 1 else 'v[%d:%d]' % (a, a + n - 1)

def gen(stamps=False, dbgst=False, kvflag='nt', wflag='nt', wqflag='nt', force_global=False):
    a = Asm()
    if dbgst: stamps = True
    def stamp(i):
        if stamps: a('s_memrealtime s[%d:%d]' % (64 + 2 * i, 65 + 2 * i))
    def srd(d, p, size):
        a('s_mov_b32 s%d, s%d\ns_mov_b32 s%d, s%d\ns_mov_b32 s%d, %d\ns_mov_b32 s%d, 0x20000' % (d, p, d + 1, p + 1, d + 2, size, d + 3))
    def setexec(lo, hi):
        a('s_mov_b32 exec_lo, 0x%x\ns_mov_b32 exec_hi, 0x%x' % (lo, hi))
    def fullexec(): a('s_mov_b64 exec, -1')
    def consts():
        a('s_mov_b32 s98, 0x05040100\ns_mov_b32 s99, 0x07060302\ns_mov_b32 s100, 0xffff0000')
        if stamps:
            for i in range(1, 16): a('s_mov_b64 s[%d:%d], 0' % (64 + 2 * i, 65 + 2 * i))
    def bf16r(dst, src, tmp=None):
        a('v_cvt_pk_bf16_f32 %s, %s, %s' % (v(dst), v(src), v(src)))
        a('v_lshlrev_b32 %s, 16, %s' % (v(dst), v(dst)))
    def store_lg(instr):
        lg = a.label('L_sg'); ld = a.label('L_sd')
        a('s_cmp_eq_u32 s96, 0')
        a('s_cbranch_scc1 %s' % lg)
        for i in instr: a(i)
        a('s_branch %s' % ld)
        a('%s:' % lg)
        for i in instr: a(i + ' sc1')
        a('%s:' % ld)
    def lds_spin(off, target):
        lp = a.label('L_spin'); dn = a.label('L_spd')
        a('s_mov_b32 s97, 0')
        a('%s:' % lp)
        a('ds_read_b32 v10, v4 offset:%d' % off)
        a('s_add_u32 s97, s97, 1')
        a('s_waitcnt lgkmcnt(0)')
        a('v_readfirstlane_b32 s57, v10')
        a('s_cmp_ge_u32 s97, %d' % (POLL_MAX * 8))
        a('s_cbranch_scc1 %s' % dn)
        a('s_cmp_lt_u32 s57, %d' % target)
        a('s_cbranch_scc1 %s' % lp)
        a('%s:' % dn)
    def poll(loads, groups, tmp, pre=None):
        lp = a.label('L_poll'); dn = a.label('L_pdone')
        a('s_mov_b32 s97, 0')
        a('%s:' % lp)
        for l in loads: a(l)
        n = len(loads)
        first = True
        for k, regs in enumerate(groups):
            a('s_waitcnt vmcnt(%d)' % (n - 1 - k))
            regs = list(regs)
            if first:
                if len(regs) == 1: a('v_mov_b32 %s, %s' % (v(tmp), v(regs.pop(0))))
                else: a('v_max_u32 %s, %s, %s' % (v(tmp), v(regs.pop(0)), v(regs.pop(0))))
                first = False
            while len(regs) >= 2:
                a('v_max3_u32 %s, %s, %s, %s' % (v(tmp), v(regs.pop(0)), v(regs.pop(0)), v(tmp)))
            if regs: a('v_max_u32 %s, %s, %s' % (v(tmp), v(regs.pop(0)), v(tmp)))
        a('v_cmp_eq_u32 vcc, -1, %s' % v(tmp))
        a('s_cbranch_vccz %s' % dn)
        a('s_add_u32 s97, s97, 1')
        a('s_cmp_lt_u32 s97, %d' % POLL_MAX)
        a('s_cbranch_scc1 %s' % lp)
        a('%s:' % dn)
    def layernorm(D, F, N, T):
        for k in range(9):
            a('v_lshlrev_b32 %s, 16, %s' % (v(F + 2 * k), v(D[k])))
            a('v_and_b32 %s, s100, %s' % (v(F + 2 * k + 1), v(D[k])))
        s0, s1, q0, q1, t0, t1 = range(T, T + 6)
        a('v_add_f32 %s, %s, %s' % (v(s0), v(F), v(F + 2)))
        a('v_add_f32 %s, %s, %s' % (v(s1), v(F + 1), v(F + 3)))
        a('v_mul_f32 %s, %s, %s' % (v(q0), v(F), v(F)))
        a('v_mul_f32 %s, %s, %s' % (v(q1), v(F + 1), v(F + 1)))
        a('v_fmac_f32 %s, %s, %s' % (v(q0), v(F + 2), v(F + 2)))
        a('v_fmac_f32 %s, %s, %s' % (v(q1), v(F + 3), v(F + 3)))
        for k in range(2, 9):
            a('v_add_f32 %s, %s, %s' % (v(s0), v(s0), v(F + 2 * k)))
            a('v_add_f32 %s, %s, %s' % (v(s1), v(s1), v(F + 2 * k + 1)))
            a('v_fmac_f32 %s, %s, %s' % (v(q0), v(F + 2 * k), v(F + 2 * k)))
            a('v_fmac_f32 %s, %s, %s' % (v(q1), v(F + 2 * k + 1), v(F + 2 * k + 1)))
        a('v_add_f32 %s, %s, %s' % (v(s0), v(s0), v(s1)))
        a('v_add_f32 %s, %s, %s' % (v(q0), v(q0), v(q1)))
        for r in (8, 4, 2, 1):
            a('v_add_f32_dpp %s, %s, %s row_ror:%d row_mask:0xf bank_mask:0xf' % (v(s0), v(s0), v(s0), r))
            a('v_add_f32_dpp %s, %s, %s row_ror:%d row_mask:0xf bank_mask:0xf' % (v(q0), v(q0), v(q0), r))
        a('v_mov_b32 %s, %s' % (v(s1), v(s0)))
        a('v_mov_b32 %s, %s' % (v(q1), v(q0)))
        a('v_permlane16_swap_b32 %s, %s' % (v(s0), v(s1)))
        a('v_permlane16_swap_b32 %s, %s' % (v(q0), v(q1)))
        a('v_add_f32 %s, %s, %s' % (v(s0), v(s0), v(s1)))
        a('v_add_f32 %s, %s, %s' % (v(q0), v(q0), v(q1)))
        inv = 0x3ae38e39
        a('v_mul_f32 %s, 0x%x, %s' % (v(s0), inv, v(s0)))
        a('v_mul_f32 %s, 0x%x, %s' % (v(q0), inv, v(q0)))
        a('v_fma_f32 %s, -%s, %s, %s' % (v(q0), v(s0), v(s0), v(q0)))
        a('v_max_f32 %s, 0, %s' % (v(q0), v(q0)))
        a('v_cvt_pk_bf16_f32 %s, %s, %s' % (v(t0), v(s0), v(q0)))
        a('v_lshlrev_b32 %s, 16, %s' % (v(s0), v(t0)))
        a('v_and_b32 %s, s100, %s' % (v(q0), v(t0)))
        a('v_add_f32 %s, 0x3727c5ac, %s' % (v(q0), v(q0)))
        bf16r(q0, q0)
        a('v_sqrt_f32 %s, %s' % (v(q0), v(q0)))
        bf16r(q0, q0)
        a('v_rcp_f32 %s, %s' % (v(q0), v(q0)))
        for k in range(9):
            a('v_sub_f32 %s, %s, %s' % (v(F + 2 * k), v(F + 2 * k), v(s0)))
            a('v_sub_f32 %s, %s, %s' % (v(F + 2 * k + 1), v(F + 2 * k + 1), v(s0)))
            a('v_cvt_pk_bf16_f32 %s, %s, %s' % (v(t0), v(F + 2 * k), v(F + 2 * k + 1)))
            a('v_lshlrev_b32 %s, 16, %s' % (v(F + 2 * k), v(t0)))
            a('v_and_b32 %s, s100, %s' % (v(F + 2 * k + 1), v(t0)))
            a('v_mul_f32 %s, %s, %s' % (v(F + 2 * k), v(F + 2 * k), v(q0)))
            a('v_mul_f32 %s, %s, %s' % (v(F + 2 * k + 1), v(F + 2 * k + 1), v(q0)))
            a('v_cvt_pk_bf16_f32 %s, %s, %s' % (v(N[k]), v(F + 2 * k), v(F + 2 * k + 1)))
    def ln_addrs(dA, dB, t):
        a('v_lshrrev_b32 %s, 5, v1' % v(t))
        a('s_lshl_b32 s57, s49, 1')
        a('v_add_u32 %s, s57, %s' % (v(t), v(t)))
        a('v_mul_u32_u24 %s, %d, %s' % (v(t), RS, v(t)))
        a('v_bfe_u32 %s, v1, 2, 3' % v(dA))
        a('v_lshl_add_u32 %s, %s, 6, %s' % (v(dA), v(dA), v(t)))
        a('v_and_b32 %s, 1, v1' % v(dB))
        a('v_lshl_add_u32 %s, %s, 5, %s' % (v(dA), v(dB), v(dA)))
        a('v_lshl_add_u32 %s, %s, 2, %s' % (v(t), v(dB), v(t)))
        a('v_bfe_u32 %s, v1, 1, 1' % v(dB))
        a('v_lshl_add_u32 %s, %s, 3, %s' % (v(dA), v(dB), v(dA)))
        a('v_bfe_u32 %s, v1, 1, 2' % v(dB))
        a('v_lshl_add_u32 %s, %s, 4, %s' % (v(t), v(dB), v(t)))
        a('v_bfe_u32 %s, v1, 3, 1' % v(dB))
        a('v_lshl_add_u32 %s, %s, 3, %s' % (v(t), v(dB), v(t)))
        a('v_bfe_u32 %s, v1, 4, 1' % v(dB))
        a('v_lshl_add_u32 %s, %s, 6, %s' % (v(dB), v(dB), v(t)))
    def ln_write(base, dA, dB, N):
        o = base // 8
        a('ds_write_b64 %s, %s offset:%d' % (v(dA), v(N[0], 2), base))
        a('ds_write_b64 %s, %s offset:%d' % (v(dA), v(N[2], 2), base + 16))
        a('ds_write_b64 %s, %s offset:%d' % (v(dA), v(N[4], 2), base + 512))
        a('ds_write_b64 %s, %s offset:%d' % (v(dA), v(N[6], 2), base + 528))
        a('ds_write_b32 %s, %s offset:%d' % (v(dB), v(N[8]), base + 1024))
    def row_addrs(dA, dB):
        a('v_lshrrev_b32 %s, 5, v1' % v(dB))
        a('s_lshl_b32 s57, s49, 1')
        a('v_add_u32 %s, s57, %s' % (v(dB), v(dB)))
        a('v_mul_u32_u24 %s, 1152, %s' % (v(dB), v(dB)))
        a('v_and_b32 %s, 31, v1' % v(dA))
        a('v_lshl_add_u32 %s, %s, 2, %s' % (v(dB), v(dA), v(dB)))
        a('v_mul_u32_u24 %s, 12, %s' % (v(dA), v(dA)))
        a('v_add_u32 %s, %s, %s' % (v(dA), v(dA), v(dB)))

    a('L_start:')
    stamp(0)
    a('s_load_dwordx16 s[4:19], s[0:1], 0')
    a('s_load_dwordx8 s[20:27], s[0:1], 64')
    a('s_load_dwordx2 s[28:29], s[0:1], 96')
    a('s_cmp_ge_u32 s2, 256')
    a('s_cbranch_scc1 L_end')
    a('s_getpc_b64 s[62:63]')
    a('L_pc:')
    a('s_lshr_b32 s51, s2, 3')
    a('s_and_b32 s57, s51, %d\ns_lshl_b32 s57, s57, 11' % (WARM_SLICES - 1))
    a('v_lshl_add_u32 v11, v0, 2, s57')
    a('v_min_u32 v11, L_end-L_pc, v11')
    a('global_load_dword v25, v11, s[62:63]')
    a('v_and_b32 v1, 63, v0')
    a('v_lshrrev_b32 v2, 6, v0')
    a('v_mov_b32 v4, 0\nv_mov_b32 v5, 0')
    a('v_readfirstlane_b32 s48, v2')
    a('ds_write2_b64 v4, v[4:5], v[4:5] offset0:0 offset1:1')
    a('s_and_b32 s50, s2, 7')
    a('s_lshr_b32 s52, s51, 4\ns_lshl_b32 s57, s50, 1\ns_add_u32 s52, s52, s57')
    a('s_and_b32 s53, s51, 15\ns_lshr_b32 s54, s53, 1\ns_and_b32 s55, s53, 1')
    a('s_and_b32 s49, s48, 3')
    a('s_lshl_b32 s56, s54, 4\ns_add_u32 s56, s56, s52\ns_lshl_b32 s56, s56, 20')
    a('s_lshl_b32 s57, s55, 17\ns_add_u32 s56, s56, s57')
    a('s_lshl_b32 s57, s49, 15\ns_add_u32 s56, s56, s57')
    a('s_add_u32 s56, s56, %d' % (3072 * 256))
    a('v_and_b32 v2, 15, v1')
    a('v_lshrrev_b32 v3, 4, v1')
    a('v_lshlrev_b32 v6, 8, v2\nv_lshl_add_u32 v6, v3, 4, v6')
    row_addrs(8, 9)
    a('s_mov_b32 s34, %d\ns_mov_b32 s35, 0x20000' % (1 << 27))
    a('s_mov_b32 s42, 9216\ns_mov_b32 s43, 0x20000')
    a('s_cmp_ge_u32 s48, 4')
    a('s_waitcnt lgkmcnt(0)')
    a('s_barrier')
    a('s_cbranch_scc0 L_vwave')
    a('s_setprio 2')
    a('s_mov_b32 s32, s6\ns_mov_b32 s33, s7')
    def kl(t):
        a('s_add_u32 s57, s56, %d' % (t * 4096))
        for s in range(4):
            a('buffer_load_dwordx4 %s, v6, s[32:35], s57 offen offset:%d %s' % (v(128 + (t * 4 + s) * 4, 4), s * 64, kvflag))
    kl(0)
    a('s_load_dwordx2 s[30:31], s[28:29], 0')
    for t in range(1, 8): kl(t)
    a('s_branch L_kwave')

    a('L_vwave:')
    a('s_setprio 3')
    a('s_mov_b32 s40, s4\ns_mov_b32 s41, s5')
    a('buffer_load_dwordx4 v[16:19], v8, s[40:43], 0 offen')
    a('buffer_load_dwordx4 v[20:23], v8, s[40:43], 0 offen offset:512')
    a('buffer_load_dword v24, v9, s[40:43], 0 offen offset:1024')
    srd(44, 10, 576 * 4096 * 2)
    a('v_lshrrev_b32 v10, 3, v1\nv_lshlrev_b32 v10, 13, v10\nv_bfe_u32 v11, v1, 4, 2\nv_lshlrev_b32 v11, 1, v11\nv_and_b32 v12, 7, v1\nv_xor_b32 v11, v11, v12')
    a('v_lshl_add_u32 v10, v11, 4, v10')
    a('s_lshr_b32 s61, s53, 2\ns_and_b32 s62, s53, 3')
    a('s_mul_i32 s58, s61, %d\ns_lshl_b32 s57, s49, 16\ns_add_u32 s58, s58, s57' % (144 * 8192))
    a('s_lshl_b32 s57, s52, 9\ns_add_u32 s58, s58, s57\ns_lshl_b32 s57, s62, 7\ns_add_u32 s58, s58, s57')
    a('s_lshl_b32 s59, s49, 10\ns_add_u32 s59, s59, %d' % L_WQ)
    for k in range(5):
        if k == 4:
            a('s_cmp_ge_u32 s49, 2')
            a('s_cbranch_scc1 L_wq4')
        a('s_mov_b32 m0, s59')
        a('s_add_u32 s59, s59, 4096')
        a('buffer_load_dwordx4 v10, s[44:47], s58 offen %s lds' % wqflag)
        a('s_add_u32 s58, s58, %d' % (32 * 8192))
    a('L_wq4:')
    a('s_load_dwordx2 s[30:31], s[28:29], 0')
    srd(36, 28, WS_REC)
    a('v_lshlrev_b32 v11, 4, v0\nv_mov_b32 v10, 0x%x\nv_cmp_gt_u32 vcc, %d, v0\nv_cndmask_b32 v11, v10, v11, vcc' % (OOB, CLR_LANES))
    a('v_mov_b32 v12, -1\nv_mov_b32 v13, -1\nv_mov_b32 v14, -1\nv_mov_b32 v15, -1')
    a('s_mul_i32 s60, s2, %d\ns_add_u32 s60, s60, %d' % (CLR_LANES * 16, W_CLR))
    a('buffer_store_dwordx4 v[12:15], v11, s[36:39], s60 offen sc1')
    a('s_mov_b32 s32, s8\ns_mov_b32 s33, s9')
    consts()
    a('v_lshrrev_b32 v10, 5, v1\ns_lshl_b32 s57, s49, 1\nv_add_u32 v10, s57, v10\nv_lshlrev_b32 v10, 5, v10')
    a('v_add_u32 v8, v8, v10\nv_add_u32 v9, v9, v10')
    a('v_bfe_u32 v6, v1, 2, 2\nv_lshl_add_u32 v6, v3, 2, v6')
    a('v_bfe_u32 v7, v6, 1, 2\nv_xor_b32 v7, s49, v7\nv_lshlrev_b32 v7, 5, v7\nv_lshl_add_u32 v6, v6, 7, v7')
    a('v_and_b32 v7, 3, v1\nv_lshl_add_u32 v6, v7, 3, v6')
    a('v_and_b32 v7, 7, v1\nv_mul_u32_u24 v7, %d, v7\nv_lshl_add_u32 v7, v3, 3, v7\ns_mul_i32 s57, s61, 288\nv_add_u32 v7, s57, v7' % RS)
    a('s_waitcnt vmcnt(5)')
    stamp(1)
    layernorm([16, 17, 18, 19, 20, 21, 22, 23, 24], 32, [52, 53, 54, 55, 56, 57, 58, 59, 60], 26)
    a('ds_write_b128 v8, v[52:55] offset:%d' % L_XN)
    a('ds_write_b128 v8, v[56:59] offset:%d' % (L_XN + 512))
    a('ds_write_b32 v9, v60 offset:%d' % (L_XN + 1024))
    a('v_mov_b32 v4, 0\nv_mov_b32 v5, 1')
    a('s_waitcnt vmcnt(0) lgkmcnt(0)')
    stamp(2)
    setexec(1, 0)
    a('ds_add_u32 v4, v5 offset:%d' % (L_FLAG + 0))
    fullexec()
    a('s_add_u32 s30, s30, 1\ns_addc_u32 s31, s31, 0\ns_and_b32 s3, s31, 0xff')
    a('s_getreg_b32 s57, hwreg(HW_REG_XCC_ID, 0, 4)')
    a('s_mul_i32 s58, s57, s57\ns_lshl_b32 s58, s58, 16\ns_lshl_b32 s57, s57, 8\ns_add_u32 s57, s57, s58\ns_add_u32 s57, s57, 1')
    a('v_mov_b32 v8, s57')
    a('s_lshl_b32 s58, s50, 5')
    a('v_mov_b32 v9, s58')
    QA = 64; QB = 64 + 20
    a('v_mov_b32 %s, 0\nv_mov_b32 %s, 0\nv_mov_b32 %s, 0\nv_mov_b32 %s, 0' % (v(QA + 18), v(QA + 19), v(QB + 18), v(QB + 19)))
    a('v_lshlrev_b32 v11, 13, v2\nv_lshl_add_u32 v11, v3, 5, v11')
    a('v_mov_b32 v10, 0x%x\nv_cmp_gt_u32 vcc, 8, v2\nv_cndmask_b32 v11, v10, v11, vcc' % OOB)
    a('s_lshl_b32 s57, s52, 16\ns_lshl_b32 s58, s61, 11\ns_add_u32 s57, s57, s58\ns_lshl_b32 s58, s62, 9\ns_add_u32 s57, s57, s58')
    a('s_lshl_b32 s58, s49, 7\ns_add_u32 s57, s57, s58\ns_add_u32 s59, s57, %d' % W_Q)
    a('v_mov_b32 v33, s30\nv_mov_b32 v35, s30\nv_mov_b32 v37, s30\nv_mov_b32 v39, s30')
    a('v_mov_b32 v42, 0xffffff00')
    lds_spin(L_FLAG + 0, 4)
    for s in range(5):
        a('ds_read_b64_tr_b16 %s, v6 offset:%d' % (v(QA + 4 * s, 2), L_WQ + s * 4096))
        a('ds_read_b64 %s, v7 offset:%d' % (v(QB + 4 * s, 2), L_XN + s * 64))
        if s < 4:
            a('ds_read_b64_tr_b16 %s, v6 offset:%d' % (v(QA + 4 * s + 2, 2), L_WQ + s * 4096 + 2048))
            a('ds_read_b64 %s, v7 offset:%d' % (v(QB + 4 * s + 2, 2), L_XN + s * 64 + 32))
        if s == 2: a('s_waitcnt lgkmcnt(8)')
    a('s_cmp_lg_u32 s48, 0')
    a('s_cbranch_scc1 L_noatom')
    setexec(1, 0)
    a('global_atomic_add v9, v8, s[26:27]')
    fullexec()
    a('L_noatom:')
    for t in range(5):
        a('s_waitcnt lgkmcnt(%d)' % max(0, 14 - 4 * t))
        a('v_mfma_f32_16x16x32_bf16 v[28:31], %s, %s, %s' % (v(QA + 4 * t, 4), v(QB + 4 * t, 4), '0' if t == 0 else 'v[28:31]'))
    for r in range(4): a('v_and_or_b32 %s, %s, v42, s3' % (v(32 + 2 * r), v(28 + r)))
    a('buffer_store_dwordx4 v[32:35], v11, s[36:39], s59 offen sc1')
    a('buffer_store_dwordx4 v[36:39], v11, s[36:39], s59 offen offset:16 sc1')
    stamp(3)
    a('s_setprio 1')
    a('v_lshlrev_b32 v6, 10, v3\nv_lshl_add_u32 v6, v2, 4, v6')
    for blk in range(4):
        for j in range(8):
            if j % 4 == 0: a('s_add_u32 s57, s56, %d' % (blk * 8192 + (j >> 2) * 4096))
            a('buffer_load_dwordx4 %s, v6, s[32:35], s57 offen offset:%d %s' % (v(128 + (blk * 8 + j) * 4, 4), (j & 3) * 256, kvflag))
    a('s_setprio 3')
    stamp(4)
    a('s_lshl_b32 s57, s49, 12\ns_add_u32 s57, s57, %d' % L_P)
    a('v_and_b32 v7, 1, v1\nv_lshlrev_b32 v8, 8, v3\nv_add_u32 v8, s57, v8')
    a('v_lshl_add_u32 v9, v7, 4, v8')
    a('v_add_u32 v8, 32, v8')
    a('v_lshrrev_b32 v10, 1, v2')
    for i in range(8):
        a('v_cmp_eq_u32 vcc, %d, v10' % i)
        a('v_cndmask_b32 %s, v8, v9, vcc' % v(16 + i))
    a('v_lshlrev_b32 v11, 3, v7')
    a('s_barrier')
    stamp(5)
    a('v_mov_b32 v4, 0')
    a('ds_read_b32 v12, v4 offset:%d' % (L_FLAG + 8))
    for w in range(4): a('ds_read_b64 %s, v11 offset:%d' % (v(32 + 2 * w, 2), L_STW + w * 16))
    a('s_lshl_b32 s57, s49, 4')
    a('v_add_u32 v13, s57, v11')
    a('ds_read_b32 v40, v13 offset:%d' % L_STW)
    PB = [96, 64 - 32]
    for i in range(8): a('ds_read_b128 %s, %s' % (v(PB[0] + 4 * i, 4), v(16 + i)))
    a('s_waitcnt lgkmcnt(8)')
    a('v_readfirstlane_b32 s96, v12')
    a('v_max3_f32 v41, v32, v34, v36\nv_max_f32 v41, v41, v38')
    a('s_mov_b32 s57, 0x%x' % LOG2E)
    for w in range(4):
        a('v_sub_f32 %s, %s, v41' % (v(32 + 2 * w), v(32 + 2 * w)))
        a('v_mul_f32 %s, s57, %s' % (v(32 + 2 * w), v(32 + 2 * w)))
        a('v_exp_f32 %s, %s' % (v(32 + 2 * w), v(32 + 2 * w)))
    a('v_sub_f32 v40, v40, v41\nv_mul_f32 v40, s57, v40\nv_exp_f32 v40, v40')
    a('v_mul_f32 v42, v32, v33\nv_fmac_f32 v42, v34, v35\nv_fmac_f32 v42, v36, v37\nv_fmac_f32 v42, v38, v39')
    a('v_rcp_f32 v43, v42')
    a('v_mul_f32 v26, v40, v43')
    a('v_mov_b32 v24, v41\nv_mov_b32 v25, v42')
    a('v_min_u32 v24, -2, v24\nv_min_u32 v25, -2, v25')
    if force_global: a('s_mov_b32 s96, 0')
    a('v_lshlrev_b32 v12, 12, v7')
    a('v_lshl_add_u32 v12, v3, 6, v12')
    a('v_lshl_add_u32 v12, v10, 3, v12')
    a('s_lshl_b32 s58, s50, 14\ns_and_b32 s57, s52, 1\ns_lshl_b32 s57, s57, 13\ns_add_u32 s58, s58, s57')
    a('s_lshl_b32 s57, s55, 3\ns_add_u32 s57, s57, s54')
    a('s_lshl_b32 s59, s57, 8\ns_add_u32 s58, s58, s59\ns_add_u32 s58, s58, %d' % W_O)
    a('s_lshl_b32 s59, s57, 3\ns_lshl_b32 s57, s50, 9\ns_add_u32 s59, s59, s57\ns_and_b32 s57, s52, 1\ns_lshl_b32 s57, s57, 8\ns_add_u32 s59, s59, s57\ns_add_u32 s59, s59, %d' % W_ST)
    a('v_lshlrev_b32 v13, 7, v7\nv_mov_b32 v14, 0x%x\nv_cmp_gt_u32 vcc, 2, v1\nv_cndmask_b32 v13, v14, v13, vcc' % OOB)
    a('v_lshlrev_b32 v14, 4, v1')
    a('s_lshl_b32 s57, s49, 10')
    a('v_add_u32 v15, s57, v14')
    AS = 64
    for blk in range(4):
        cur = PB[blk & 1]; nxt = PB[(blk + 1) & 1]
        VD = 128 + blk * 32
        for jp in range(4):
            a('s_waitcnt vmcnt(%d)' % (32 - blk * 8 - 2 * jp - 2))
            for i in range(8):
                a('v_perm_b32 %s, %s, %s, %s' % (v(AS + 4 * i + jp), v(VD + (2 * jp + 1) * 4 + (i >> 1)), v(VD + 2 * jp * 4 + (i >> 1)), 's99' if i & 1 else 's98'))
        a('s_waitcnt lgkmcnt(0)')
        if blk < 3:
            for i in range(8): a('ds_read_b128 %s, %s offset:%d' % (v(nxt + 4 * i, 4), v(16 + i), (blk + 1) * 1024))
        for i in range(8):
            a('v_mfma_f32_16x16x32_bf16 v[28:31], %s, %s, %s' % (v(AS + 4 * i, 4), v(cur + 4 * i, 4), '0' if (blk == 0 and i == 0) else 'v[28:31]'))
    stamp(6)
    for r in range(4): a('v_mul_f32 %s, v26, %s' % (v(28 + r), v(28 + r)))
    a('ds_write_b128 v15, v[28:31] offset:%d' % L_RED)
    a('v_mov_b32 v5, 1')
    a('s_waitcnt lgkmcnt(0)')
    setexec(1, 0)
    a('ds_add_rtn_u32 v6, v4, v5 offset:%d' % (L_FLAG + 4))
    fullexec()
    a('s_waitcnt lgkmcnt(0)')
    a('v_readfirstlane_b32 s57, v6')
    a('s_cmp_lg_u32 s57, 3')
    a('s_cbranch_scc1 L_fin')
    for w in range(4): a('ds_read_b128 %s, v14 offset:%d' % (v(32 + 4 * w, 4), L_RED + w * 1024))
    a('s_waitcnt lgkmcnt(2)')
    for r in range(4): a('v_add_f32 %s, %s, %s' % (v(32 + r), v(32 + r), v(36 + r)))
    a('s_waitcnt lgkmcnt(0)')
    for r in range(4): a('v_add_f32 %s, %s, %s' % (v(40 + r), v(40 + r), v(44 + r)))
    for r in range(4): a('v_add_f32 %s, %s, %s' % (v(32 + r), v(32 + r), v(40 + r)))
    a('v_cvt_pk_bf16_f32 v36, v32, v33\nv_cvt_pk_bf16_f32 v37, v34, v35')
    a('v_min_u32 v36, -2, v36\nv_min_u32 v37, -2, v37')
    store_lg(['buffer_store_dwordx2 v[36:37], v12, s[36:39], s58 offen', 'buffer_store_dwordx2 v[24:25], v13, s[36:39], s59 offen'])
    stamp(7)
    a('s_branch L_fin')

    a('L_kwave:')
    srd(36, 28, WS_REC)
    consts()
    a('s_setprio 3')
    stamp(1)
    a('s_waitcnt lgkmcnt(0)')
    a('s_add_u32 s30, s30, 1\ns_addc_u32 s31, s31, 0\ns_and_b32 s3, s31, 0xff')
    a('v_and_b32 v7, 31, v1\nv_lshlrev_b32 v7, 4, v7\nv_lshrrev_b32 v8, 5, v1\nv_lshl_add_u32 v7, v8, 11, v7\nv_add_u32 v13, 4096, v7')
    a('s_lshl_b32 s57, s52, 3\ns_add_u32 s57, s57, s54\ns_lshl_b32 s57, s57, 13\ns_lshl_b32 s58, s49, 9\ns_add_u32 s57, s57, s58\ns_add_u32 s58, s57, %d' % W_Q)
    a('v_mov_b32 v14, 0xffffff00')
    a('v_mov_b32 v4, 0\nv_mov_b32 v5, 1')
    a('s_mov_b32 s97, 0')
    a('L_qpoll:')
    a('buffer_load_dwordx4 v[112:115], v7, s[36:39], s58 offen sc1')
    a('buffer_load_dwordx4 v[116:119], v13, s[36:39], s58 offen sc1')
    a('s_add_u32 s97, s97, 1')
    a('s_waitcnt vmcnt(0)')
    a('v_xor_b32 v8, s3, v112\nv_xor_b32 v9, s3, v114\nv_xor_b32 v10, s3, v116\nv_xor_b32 v11, s3, v118')
    a('v_or3_b32 v8, v8, v9, v10\nv_or_b32 v8, v8, v11\nv_and_b32 v8, 0xff, v8')
    a('v_xor_b32 v9, s30, v113\nv_xor_b32 v10, s30, v115\nv_xor_b32 v11, s30, v117\nv_xor_b32 v12, s30, v119')
    a('v_or3_b32 v8, v8, v9, v10\nv_or3_b32 v8, v8, v11, v12')
    a('v_cmp_ne_u32 vcc, 0, v8')
    a('s_cbranch_vccz L_qok')
    a('s_cmp_lt_u32 s97, %d' % POLL_MAX)
    a('s_cbranch_scc1 L_qpoll')
    a('L_qok:')
    for r in (112, 114, 116, 118): a('v_and_b32 %s, v14, %s' % (v(r), v(r)))
    a('v_add_f32 v8, v112, v116\nv_add_f32 v9, v114, v118')
    a('v_mov_b32 v10, v8\nv_mov_b32 v11, v9')
    a('v_permlane32_swap_b32 v8, v10\nv_permlane32_swap_b32 v9, v11')
    a('v_add_f32 v8, v8, v10\nv_add_f32 v9, v9, v11')
    a('v_cvt_pk_bf16_f32 v8, v8, v9')
    a('s_lshl_b32 s57, s49, 7')
    a('v_and_b32 v10, 31, v1\nv_lshl_add_u32 v10, v10, 2, s57')
    a('ds_write_b32 v10, v8 offset:%d' % L_QS)
    a('v_and_b32 v11, 1, v1\nv_lshlrev_b32 v11, 8, v11\nv_lshl_add_u32 v11, v3, 4, v11')
    a('s_waitcnt lgkmcnt(0)')
    setexec(1, 0)
    a('ds_add_u32 v4, v5 offset:%d' % (L_FLAG + 12))
    fullexec()
    lds_spin(L_FLAG + 12, 4)
    stamp(2)
    for s in range(4): a('ds_read_b128 %s, v11 offset:%d' % (v(96 + 4 * s, 4), L_QS + s * 64))
    a('s_waitcnt lgkmcnt(0)')
    S = 64
    for s in range(4):
        for t in range(8):
            a('v_mfma_f32_16x16x32_bf16 %s, %s, %s, %s' % (v(S + 4 * t, 4), v(128 + (t * 4 + s) * 4, 4), v(96 + 4 * s, 4), '0' if s == 0 else v(S + 4 * t, 4)))
    a('s_mov_b32 s57, 0x%x' % SCALE)
    for p in range(16):
        x0, x1 = S + 2 * p, S + 2 * p + 1
        a('v_cvt_pk_bf16_f32 v8, %s, %s' % (v(x0), v(x1)))
        a('v_lshlrev_b32 %s, 16, v8\nv_and_b32 %s, s100, v8' % (v(x0), v(x1)))
        a('v_mul_f32 %s, s57, %s\nv_mul_f32 %s, s57, %s' % (v(x0), v(x0), v(x1), v(x1)))
        a('v_cvt_pk_bf16_f32 v8, %s, %s' % (v(x0), v(x1)))
        a('v_lshlrev_b32 %s, 16, v8\nv_and_b32 %s, s100, v8' % (v(x0), v(x1)))
    a('v_max_f32 v8, %s, %s' % (v(S), v(S + 1)))
    for p in range(1, 16): a('v_max3_f32 v8, %s, %s, v8' % (v(S + 2 * p), v(S + 2 * p + 1)))
    a('v_mov_b32 v9, v8\nv_permlane16_swap_b32 v8, v9\nv_max_f32 v8, v8, v9')
    a('v_mov_b32 v9, v8\nv_permlane32_swap_b32 v8, v9\nv_max_f32 v8, v8, v9')
    a('s_mov_b32 s57, 0x%x' % LOG2E)
    for k in range(32):
        a('v_sub_f32 %s, %s, v8' % (v(S + k), v(S + k)))
        a('v_mul_f32 %s, s57, %s' % (v(S + k), v(S + k)))
        a('v_exp_f32 %s, %s' % (v(S + k), v(S + k)))
    a('v_add_f32 v9, %s, %s' % (v(S), v(S + 1)))
    a('v_add_f32 v10, %s, %s' % (v(S + 2), v(S + 3)))
    for k in range(4, 32, 2):
        a('v_add_f32 v9, v9, %s\nv_add_f32 v10, v10, %s' % (v(S + k), v(S + k + 1)))
    a('v_add_f32 v9, v9, v10')
    a('v_mov_b32 v10, v9\nv_permlane16_swap_b32 v9, v10\nv_add_f32 v9, v9, v10')
    a('v_mov_b32 v10, v9\nv_permlane32_swap_b32 v9, v10\nv_add_f32 v9, v9, v10')
    for p in range(16): a('v_cvt_pk_bf16_f32 %s, %s, %s' % (v(96 + p), v(S + 2 * p), v(S + 2 * p + 1)))
    a('s_lshl_b32 s57, s49, 12')
    a('v_lshl_add_u32 v10, v1, 4, s57')
    a('v_mov_b32 v12, 0\nv_mov_b32 v13, 0\nv_mov_b32 v14, 0\nv_mov_b32 v15, 0')
    a('s_lshl_b32 s57, s49, 4')
    a('v_lshl_add_u32 v11, v1, 3, s57')
    setexec(0x00030003, 0x00030003)
    for blk in range(4): a('ds_write_b128 v10, %s offset:%d' % (v(96 + 4 * blk, 4), L_P + blk * 1024))
    setexec(0x00040004, 0x00040004)
    for blk in range(4): a('ds_write_b128 v10, v[12:15] offset:%d' % (L_P + blk * 1024))
    setexec(3, 0)
    a('ds_write_b64 v11, v[8:9] offset:%d' % L_STW)
    fullexec()
    stamp(3)
    a('s_cmp_lg_u32 s49, 0')
    a('s_cbranch_scc1 L_kb1')
    srd(40, 26, 256)
    a('v_lshlrev_b32 v10, 5, v1')
    a('s_getreg_b32 s57, hwreg(HW_REG_XCC_ID, 0, 4)')
    a('s_mul_i32 s58, s57, s57\ns_lshl_b32 s58, s58, 16\ns_lshl_b32 s57, s57, 8\ns_add_u32 s57, s57, s58\ns_add_u32 s57, s57, 1\ns_lshl_b32 s58, s57, 5')
    a('s_mov_b32 s97, 0')
    a('L_cpoll:')
    a('buffer_load_dword v11, v10, s[40:43], 0 offen sc1')
    a('s_add_u32 s97, s97, 1')
    a('s_waitcnt vmcnt(0)')
    a('v_and_b32 v12, 63, v11')
    a('v_cmp_ne_u32 vcc, 32, v12')
    a('s_and_b32 s57, vcc_lo, 0xff')
    a('s_cbranch_scc0 L_cok')
    a('s_cmp_lt_u32 s97, %d' % POLL_MAX)
    a('s_cbranch_scc1 L_cpoll')
    a('L_cok:')
    a('v_readlane_b32 s57, v11, s50')
    a('s_cmp_eq_u32 s57, s58')
    a('s_cselect_b32 s57, 1, 0')
    a('v_mov_b32 v11, s57\nv_mov_b32 v12, 0')
    a('ds_write_b32 v12, v11 offset:%d' % (L_FLAG + 8))
    a('L_kb1:')
    stamp(4)
    a('s_waitcnt lgkmcnt(0)')
    a('s_barrier')
    stamp(5)
    a('s_setprio 0')
    a('v_mov_b32 v4, 0')
    a('ds_read_b32 v12, v4 offset:%d' % (L_FLAG + 8))
    a('s_cmp_lt_u32 s51, 18')
    a('s_cbranch_scc1 L_ffn')
    a('s_cmp_ge_u32 s51, 27')
    a('s_cbranch_scc1 L_fin')

    a('s_sub_u32 s61, s51, 18')
    srd(40, 12, 4096 * 1152)
    srd(44, 4, 9216)
    a('v_lshrrev_b32 v6, 3, v1\nv_mul_u32_u24 v6, 1152, v6')
    a('v_bfe_u32 v7, v1, 4, 1\nv_lshlrev_b32 v7, 1, v7\nv_and_b32 v8, 7, v1\nv_xor_b32 v7, v7, v8')
    a('v_lshl_add_u32 v6, v7, 4, v6')
    a('s_lshl_b32 s57, s50, 2\ns_add_u32 s57, s57, s49\ns_mul_i32 s58, s57, %d' % (128 * 1152))
    a('s_lshl_b32 s57, s61, 7\ns_add_u32 s58, s58, s57')
    a('s_mul_i32 s59, s49, %d\ns_add_u32 s59, s59, %d' % (16 * 1088, L_W))
    a('s_mov_b32 s60, s59')
    for k in range(16):
        a('s_mov_b32 m0, s59')
        a('s_add_u32 s59, s59, 1088')
        a('buffer_load_dwordx4 v6, s[40:43], s58 offen %s lds' % wflag)
        a('s_add_u32 s58, s58, %d' % (8 * 1152))
    a('v_bfe_u32 v7, v1, 4, 1\ns_lshl_b32 s57, s49, 1\nv_add_u32 v7, s57, v7\nv_mul_u32_u24 v7, 1152, v7')
    a('v_lshl_add_u32 v7, v2, 3, v7')
    a('s_lshl_b32 s57, s61, 7')
    a('buffer_load_dwordx2 v[20:21], v7, s[44:47], s57 offen')
    a('s_setprio 3')
    a('v_mov_b32 v8, 0x%x\nv_cmp_gt_u32 vcc, 32, v1\nv_cndmask_b32 v22, v8, v7, vcc' % OOB)
    a('s_mul_i32 s62, s50, 9216\ns_add_u32 s62, s62, s57\ns_add_u32 s62, s62, %d' % W_H)
    a('v_bfe_u32 v8, v1, 2, 2\nv_mul_u32_u24 v8, 1088, v8\nv_lshl_add_u32 v8, v3, 8, v8')
    a('v_and_b32 v9, 3, v1\nv_lshl_add_u32 v8, v9, 3, v8\nv_add_u32 v8, s60, v8')
    a('v_and_b32 v9, 1, v3\nv_lshl_add_u32 v10, v9, 5, v8')
    a('v_xor_b32 v9, 1, v9\nv_lshl_add_u32 v11, v9, 5, v8')
    a('v_lshlrev_b32 v13, 8, v2\nv_lshl_add_u32 v13, v3, 4, v13')
    a('v_lshlrev_b32 v14, 3, v2')
    a('s_lshl_b32 s58, s50, 14\ns_lshl_b32 s57, s49, 12\ns_add_u32 s58, s58, s57\ns_add_u32 s58, s58, %d' % W_O)
    a('s_lshl_b32 s59, s50, 9\ns_lshl_b32 s57, s49, 7\ns_add_u32 s59, s59, s57\ns_add_u32 s59, s59, %d' % W_ST)
    a('v_mul_u32_u24 v15, 272, v2\nv_lshl_add_u32 v15, v3, 4, v15\ns_mul_i32 s57, s49, 2176\nv_add_u32 v15, s57, v15')
    a('v_bfe_u32 v16, v1, 4, 1\ns_lshl_b32 s57, s49, 1\nv_add_u32 v16, s57, v16\nv_mul_u32_u24 v16, 272, v16\nv_lshl_add_u32 v16, v2, 4, v16')
    a('v_lshrrev_b32 v17, 5, v1\nv_mul_u32_u24 v17, 4352, v17\nv_add_u32 v16, v16, v17')
    a('v_and_b32 v17, 31, v1\nv_lshlrev_b32 v17, 4, v17')
    a('v_mov_b32 v8, 0x%x\nv_cmp_gt_u32 vcc, 32, v1\nv_cndmask_b32 v18, v8, v17, vcc' % OOB)
    a('v_lshrrev_b32 v19, 5, v1\nv_lshl_add_u32 v19, v19, 13, v17')
    a('s_lshl_b32 s63, s61, 14\ns_lshl_b32 s57, s49, 9\ns_add_u32 s63, s63, s57\ns_add_u32 s63, s63, %d' % W_P1)
    a('s_lshl_b32 s57, s50, 11\ns_add_u32 s60, s63, s57')
    a('s_waitcnt lgkmcnt(0)')
    a('v_readfirstlane_b32 s96, v12')
    if force_global: a('s_mov_b32 s96, 0')
    a('s_waitcnt vmcnt(0)')
    stamp(6)
    WF = 128
    for s in range(4):
        for nt in range(4):
            ad = 10 if nt % 2 == 0 else 11
            off = s * 4 * 1088 + (nt >> 1) * 64
            a('ds_read_b64_tr_b16 %s, %s offset:%d' % (v(WF + (s * 4 + nt) * 4, 2), v(ad), off))
            a('ds_read_b64_tr_b16 %s, %s offset:%d' % (v(WF + (s * 4 + nt) * 4 + 2, 2), v(ad), off + 128))
    a('v_lshlrev_b32 v24, 16, v20\nv_and_b32 v25, s100, v20\nv_lshlrev_b32 v26, 16, v21\nv_and_b32 v27, s100, v21')
    OF = 64
    poll(['buffer_load_dwordx2 v[28:29], v14, s[36:39], s59 offen sc1'] +
         ['buffer_load_dwordx4 %s, v13, s[36:39], s58 offen offset:%d sc1' % (v(OF + 4 * s, 4), s * 64) for s in range(4)],
         [[28, 29]] + [range(OF + 4 * s, OF + 4 * s + 4) for s in range(4)], 8)
    stamp(14)
    a('s_waitcnt lgkmcnt(0)')
    DD = 96
    for s in range(4):
        for nt in range(4):
            a('v_mfma_f32_16x16x32_bf16 %s, %s, %s, %s' % (v(DD + 4 * nt, 4), v(WF + (s * 4 + nt) * 4, 4), v(OF + 4 * s, 4), '0' if s == 0 else v(DD + 4 * nt, 4)))
    a('v_max_f32_dpp v30, v28, v28 row_ror:8 row_mask:0xf bank_mask:0xf')
    a('s_mov_b32 s57, 0x%x' % LOG2E)
    a('v_sub_f32 v30, v28, v30\nv_mul_f32 v30, s57, v30\nv_exp_f32 v30, v30')
    a('v_mul_f32 v30, v30, v29')
    a('v_add_f32_dpp v31, v30, v30 row_ror:8 row_mask:0xf bank_mask:0xf')
    a('v_rcp_f32 v31, v31')
    a('v_mul_f32 v30, v30, v31')
    for k in range(16): a('v_mul_f32 %s, v30, %s' % (v(DD + k), v(DD + k)))
    for k in range(16): a('v_add_f32_dpp %s, %s, %s row_ror:8 row_mask:0xf bank_mask:0xf' % (v(DD + k), v(DD + k), v(DD + k)))
    setexec(0x00ff00ff, 0x00ff00ff)
    for nt in range(4): a('ds_write_b128 v15, %s offset:%d' % (v(DD + 4 * nt, 4), L_RW + nt * 64))
    fullexec()
    a('s_waitcnt lgkmcnt(0)')
    a('s_barrier')
    a('ds_read_b128 v[32:35], v16 offset:%d' % L_RW)
    a('ds_read_b128 v[36:39], v16 offset:%d' % (L_RW + 2176))
    a('s_waitcnt lgkmcnt(0)')
    for r in range(4): a('v_add_f32 %s, %s, %s' % (v(32 + r), v(32 + r), v(36 + r)))
    for r in range(4): a('v_mov_b32 %s, %s' % (v(36 + r), v(32 + r)))
    for r in range(4): a('v_permlane32_swap_b32 %s, %s' % (v(32 + r), v(36 + r)))
    for r in range(4): a('v_add_f32 %s, %s, %s' % (v(32 + r), v(32 + r), v(36 + r)))
    for r in range(4): a('v_min_u32 %s, -2, %s' % (v(32 + r), v(32 + r)))
    a('buffer_store_dwordx4 v[32:35], v18, s[36:39], s60 offen sc1')
    stamp(8)
    poll(['buffer_load_dwordx4 %s, v19, s[36:39], s63 offen offset:%d sc1' % (v(64 + 4 * u, 4), u * 2048) if u < 2 else
          'buffer_load_dwordx4 %s, v19, s[36:39], s63 offen offset:%d sc1' % (v(64 + 4 * u, 4), u * 2048) for u in range(2)] +
         ['buffer_load_dwordx4 %s, v23, s[36:39], s63 offen offset:%d sc1' % (v(72 + 4 * u, 4), u * 2048) for u in range(2)],
         [range(64 + 4 * u, 68 + 4 * u) for u in range(4)], 8, ) if False else None
    a('v_add_u32 v23, 4096, v19')
    poll(['buffer_load_dwordx4 %s, v19, s[36:39], s63 offen offset:%d sc1' % (v(64 + 4 * u, 4), u * 2048) for u in range(2)] +
         ['buffer_load_dwordx4 %s, v23, s[36:39], s63 offen offset:%d sc1' % (v(72 + 4 * u, 4), u * 2048) for u in range(2)],
         [range(64 + 4 * u, 68 + 4 * u) for u in range(4)], 8)
    stamp(15)
    for r in range(4): a('v_add_f32 %s, %s, %s' % (v(64 + r), v(64 + r), v(68 + r)))
    for r in range(4): a('v_add_f32 %s, %s, %s' % (v(72 + r), v(72 + r), v(76 + r)))
    for r in range(4): a('v_add_f32 %s, %s, %s' % (v(64 + r), v(64 + r), v(72 + r)))
    for r in range(4): a('v_mov_b32 %s, %s' % (v(68 + r), v(64 + r)))
    for r in range(4): a('v_permlane32_swap_b32 %s, %s' % (v(64 + r), v(68 + r)))
    for r in range(4): a('v_add_f32 %s, %s, %s' % (v(64 + r), v(64 + r), v(68 + r)))
    a('v_cvt_pk_bf16_f32 v68, v64, v65\nv_cvt_pk_bf16_f32 v69, v66, v67')
    a('v_lshlrev_b32 v64, 16, v68\nv_and_b32 v65, s100, v68\nv_lshlrev_b32 v66, 16, v69\nv_and_b32 v67, s100, v69')
    for r in range(4): a('v_add_f32 %s, %s, %s' % (v(64 + r), v(64 + r), v(24 + r)))
    a('v_cvt_pk_bf16_f32 v68, v64, v65\nv_cvt_pk_bf16_f32 v69, v66, v67')
    a('v_min_u32 v68, -2, v68\nv_min_u32 v69, -2, v69')
    store_lg(['buffer_store_dwordx2 v[68:69], v22, s[36:39], s62 offen'])
    stamp(10)
    a('s_branch L_fin')

    a('L_ffn:')
    srd(40, 18, 576 * 9216)
    srd(44, 20, 576 * 9216)
    a('v_lshrrev_b32 v6, 2, v1\nv_mul_u32_u24 v6, 9216, v6')
    a('v_bfe_u32 v8, v1, 4, 1\nv_and_b32 v9, 3, v1\nv_xor_b32 v8, v8, v9\nv_lshl_add_u32 v6, v8, 4, v6')
    a('v_lshrrev_b32 v7, 3, v1\nv_mul_u32_u24 v7, 1152, v7\nv_bfe_u32 v8, v1, 4, 1\nv_lshlrev_b32 v8, 1, v8\nv_and_b32 v9, 7, v1\nv_xor_b32 v8, v8, v9')
    a('s_and_b32 s57, s49, 1\ns_lshl_b32 s57, s57, 2\nv_xor_b32 v8, s57, v8\nv_xor_b32 v9, 4, v8')
    a('v_lshl_add_u32 v13, v9, 4, v7\nv_lshl_add_u32 v7, v8, 4, v7')
    a('s_cmp_ge_u32 s51, 9\ns_cselect_b32 s63, 1, 0\ns_mul_i32 s57, s63, 9\ns_sub_u32 s101, s51, s57')
    a('s_mul_i32 s57, s50, 18\ns_add_u32 s57, s57, s51\ns_lshl_b32 s57, s57, 6')
    a('s_mul_i32 s58, s49, %d\ns_add_u32 s58, s58, s57' % (144 * 9216))
    a('s_mul_i32 s59, s49, 9216\ns_add_u32 s59, s59, %d' % L_G)
    for k in range(9):
        a('s_mov_b32 m0, s59')
        a('s_add_u32 s60, s59, %d' % (L_U - L_G))
        a('buffer_load_dwordx4 v6, s[40:43], s58 offen %s lds' % wflag)
        a('s_mov_b32 m0, s60')
        a('s_add_u32 s59, s59, 1024')
        a('buffer_load_dwordx4 v6, s[44:47], s58 offen %s lds' % wflag)
        a('s_add_u32 s58, s58, %d' % (16 * 9216))
    srd(40, 22, 4608 * 1152)
    a('s_mul_i32 s58, s50, 576\ns_mul_i32 s57, s63, 288\ns_add_u32 s58, s58, s57\ns_mul_i32 s57, s49, 72\ns_add_u32 s58, s58, s57\ns_mul_i32 s58, s58, 1152')
    a('s_lshl_b32 s57, s101, 7\ns_add_u32 s58, s58, s57')
    a('s_mul_i32 s59, s49, 9216\ns_add_u32 s59, s59, %d' % L_D)
    for k in range(9):
        a('s_mov_b32 m0, s59')
        a('s_add_u32 s59, s59, 1024')
        a('buffer_load_dwordx4 %s, s[40:43], s58 offen %s lds' % ('v13' if k & 1 else 'v7', wflag))
        a('s_add_u32 s58, s58, %d' % (8 * 1152))
    srd(44, 16, 1152)
    a('v_and_b32 v8, 31, v1\nv_lshlrev_b32 v9, 2, v8\nv_lshlrev_b32 v8, 4, v8')
    a('buffer_load_dwordx4 v[40:43], v8, s[44:47], 0 offen')
    a('buffer_load_dwordx4 v[44:47], v8, s[44:47], 0 offen offset:512')
    a('buffer_load_dword v48, v9, s[44:47], 0 offen offset:1024')
    a('s_setprio 3')
    srd(44, 24, 9216)
    row_addrs(6, 7)
    ln_addrs(8, 9, 10)
    a('s_mul_i32 s58, s50, 9216\ns_add_u32 s59, s58, %d\ns_add_u32 s58, s58, %d' % (W_A, W_H))
    a('v_bfe_u32 v10, v1, 2, 2\nv_lshl_add_u32 v10, v3, 2, v10\nv_lshlrev_b32 v10, 6, v10')
    a('v_and_b32 v11, 1, v3\nv_xor_b32 v11, s49, v11\nv_lshlrev_b32 v11, 4, v11\nv_and_b32 v13, 1, v1\nv_lshl_add_u32 v11, v13, 3, v11')
    a('v_add_u32 v10, v10, v11')
    a('v_bfe_u32 v13, v1, 1, 1')
    a('v_mul_u32_u24 v14, %d, v13\nv_add_u32 v10, v10, v14\nv_add_u32 v10, %d, v10' % (L_U - L_G, L_G))
    a('v_bfe_u32 v14, v1, 2, 2\nv_lshl_add_u32 v14, v3, 3, v14\nv_lshlrev_b32 v11, 7, v14')
    a('v_bfe_u32 v13, v1, 3, 2\nv_xor_b32 v13, s49, v13\nv_lshl_add_u32 v11, v13, 5, v11')
    a('v_and_b32 v13, 3, v1\nv_lshl_add_u32 v11, v13, 3, v11\nv_add_u32 v11, %d, v11' % L_D)
    a('v_and_b32 v13, 7, v1\nv_mul_u32_u24 v14, %d, v13\nv_lshl_add_u32 v14, v3, 4, v14' % RS)
    a('v_mul_u32_u24 v15, 1152, v13\nv_lshl_add_u32 v15, v3, 3, v15')
    a('v_and_b32 v16, 0x28, v1\nv_mov_b32 v17, 0x%x\nv_cmp_eq_u32 vcc, 0, v16\nv_cndmask_b32 v15, v17, v15, vcc' % OOB)
    a('s_lshl_b32 s57, s51, 6\ns_add_u32 s60, s59, s57\ns_lshl_b32 s57, s49, 4\ns_add_u32 s60, s60, s57')
    a('v_mul_u32_u24 v16, 1152, v13\nv_lshl_add_u32 v16, v3, 4, v16')
    a('s_mul_i32 s57, s63, 576\ns_add_u32 s59, s59, s57')
    a('v_lshlrev_b32 v18, 12, v13\nv_lshl_add_u32 v18, v3, 4, v18\nv_cmp_gt_u32 vcc, 8, v2\nv_cndmask_b32 v18, v17, v18, vcc')
    a('s_lshl_b32 s62, s101, 15\ns_lshl_b32 s57, s50, 9\ns_add_u32 s62, s62, s57\ns_lshl_b32 s57, s63, 8\ns_add_u32 s62, s62, s57')
    a('s_lshl_b32 s57, s49, 6\ns_add_u32 s62, s62, s57\ns_add_u32 s62, s62, %d' % W_P2)
    a('s_lshr_b32 s61, s51, 1\ns_lshl_b32 s61, s61, 15\ns_lshl_b32 s57, s50, 12\ns_add_u32 s61, s61, s57\ns_and_b32 s57, s51, 1\ns_lshl_b32 s57, s57, 7\ns_add_u32 s61, s61, s57\ns_add_u32 s61, s61, %d' % W_P2)
    a('s_waitcnt lgkmcnt(0)')
    a('v_readfirstlane_b32 s96, v12')
    if force_global: a('s_mov_b32 s96, 0')
    a('s_waitcnt vmcnt(0)')
    a('s_barrier')
    stamp(6)
    GF = 128; DF = 200
    for s in range(18):
        a('ds_read_b64_tr_b16 %s, v10 offset:%d' % (v(GF + 4 * s, 2), s * 2048))
        a('ds_read_b64_tr_b16 %s, v10 offset:%d' % (v(GF + 4 * s + 2, 2), s * 2048 + 1024))
    for s in range(9):
        a('ds_read_b64_tr_b16 %s, v11 offset:%d' % (v(DF + 4 * s, 2), s * 4096))
        a('ds_read_b64_tr_b16 %s, v11 offset:%d' % (v(DF + 4 * s + 2, 2), s * 4096 + 512))
    poll(['buffer_load_dwordx4 v[20:23], v6, s[36:39], s58 offen sc1',
          'buffer_load_dwordx4 v[24:27], v6, s[36:39], s58 offen offset:512 sc1',
          'buffer_load_dword v28, v7, s[36:39], s58 offen offset:1024 sc1'],
         [range(20, 24), range(24, 28), [28]], 19)
    stamp(7)
    N = [52, 53, 54, 55, 56, 57, 58, 59, 60]
    layernorm([20, 21, 22, 23, 24, 25, 26, 27, 28], 64, N, 30)
    ln_write(L_HN, 8, 9, N)
    ln_write(L_H, 8, 9, [20, 21, 22, 23, 24, 25, 26, 27, 28])
    a('s_waitcnt lgkmcnt(0)')
    a('s_barrier')
    stamp(8)
    HF = 56
    for s in range(18):
        a('ds_read_b128 %s, v14 offset:%d' % (v(HF + 4 * s, 4), L_HN + s * 64)) if False else None
    a('v_dot2_f32_bf16 v36, v52, v40, 0')
    for k in range(1, 9): a('v_dot2_f32_bf16 v36, %s, %s, v36' % (v(N[k]), v(40 + k)))
    HF = 64
    def hf(s): return HF + 4 * s if s < 16 else 40 + 4 * (s - 16)
    for s in range(18):
        a('ds_read_b128 %s, v14 offset:%d' % (v(hf(s), 4), L_HN + s * 64))
        if s >= 6:
            t = s - 6
            a('s_waitcnt lgkmcnt(6)')
            a('v_mfma_f32_16x16x32_bf16 v[32:35], %s, %s, %s' % (v(GF + 4 * t, 4), v(hf(t), 4), '0' if t == 0 else 'v[32:35]'))
    for t in range(12, 18):
        a('s_waitcnt lgkmcnt(%d)' % (17 - t))
        a('v_mfma_f32_16x16x32_bf16 v[32:35], %s, %s, v[32:35]' % (v(GF + 4 * t, 4), v(hf(t), 4)))
    for r in (8, 4, 2, 1):
        a('v_add_f32_dpp v36, v36, v36 row_ror:%d row_mask:0xf bank_mask:0xf' % r)
    a('v_mov_b32 v37, v36\nv_permlane16_swap_b32 v36, v37\nv_add_f32 v36, v36, v37')
    a('v_cvt_pk_bf16_f32 v48, v32, v33\nv_cvt_pk_bf16_f32 v49, v34, v35')
    a('v_mov_b32 v50, v48\nv_mov_b32 v51, v49')
    a('v_permlane32_swap_b32 v48, v50\nv_permlane32_swap_b32 v49, v51')
    a('v_lshlrev_b32 v52, 16, v48\nv_and_b32 v53, s100, v48\nv_lshlrev_b32 v54, 16, v49\nv_and_b32 v55, s100, v49')
    a('s_mov_b32 s57, 0x%x' % (LOG2E | 0x80000000))
    for r in range(4): a('v_mul_f32 %s, s57, %s' % (v(56 + r), v(52 + r)))
    for r in range(4): a('v_exp_f32 %s, %s' % (v(56 + r), v(56 + r)))
    for r in range(4): a('v_add_f32 %s, 1.0, %s' % (v(56 + r), v(56 + r)))
    for r in range(4): a('v_rcp_f32 %s, %s' % (v(56 + r), v(56 + r)))
    for r in range(4): a('v_mul_f32 %s, %s, %s' % (v(52 + r), v(52 + r), v(56 + r)))
    a('v_cvt_pk_bf16_f32 v48, v52, v53\nv_cvt_pk_bf16_f32 v49, v54, v55')
    a('v_lshlrev_b32 v52, 16, v48\nv_and_b32 v53, s100, v48\nv_lshlrev_b32 v54, 16, v49\nv_and_b32 v55, s100, v49')
    a('v_lshlrev_b32 v56, 16, v50\nv_and_b32 v57, s100, v50\nv_lshlrev_b32 v58, 16, v51\nv_and_b32 v59, s100, v51')
    for r in range(4): a('v_mul_f32 %s, %s, %s' % (v(52 + r), v(52 + r), v(56 + r)))
    a('v_cvt_pk_bf16_f32 v48, v52, v53\nv_cvt_pk_bf16_f32 v49, v54, v55')
    a('v_min_u32 v48, -2, v48\nv_min_u32 v49, -2, v49')
    store_lg(['buffer_store_dwordx2 v[48:49], v15, s[36:39], s60 offen'])
    stamp(9)
    bf16r(36, 36)
    a('v_mul_f32 v36, s57, v36\nv_exp_f32 v36, v36\nv_add_f32 v36, 1.0, v36\nv_rcp_f32 v36, v36')
    bf16r(36, 36)
    a('s_lshl_b32 s57, s49, 3')
    a('v_lshrrev_b32 v37, 5, v1\nv_lshl_add_u32 v37, v37, 2, s57')
    a('ds_write_b32 v37, v36 offset:%d' % L_STW)
    AF = 64
    poll(['buffer_load_dwordx4 %s, v16, s[36:39], s59 offen offset:%d sc1' % (v(AF + 4 * s, 4), s * 64) for s in range(9)],
         [range(AF + 4 * s, AF + 4 * s + 4) for s in range(9)], 19)
    stamp(10)
    for s in range(9):
        a('v_mfma_f32_16x16x32_bf16 v[32:35], %s, %s, %s' % (v(DF + 4 * s, 4), v(AF + 4 * s, 4), '0' if s == 0 else 'v[32:35]'))
    for r in range(4): a('v_min_u32 %s, -2, %s' % (v(32 + r), v(32 + r)))
    a('buffer_store_dwordx4 v[32:35], v18, s[36:39], s62 offen sc1')
    stamp(11)
    a('s_waitcnt lgkmcnt(0)')
    a('s_barrier')
    a('s_cmp_lg_u32 s49, 0')
    a('s_cbranch_scc1 L_fin')
    a('v_lshrrev_b32 v6, 3, v1\nv_lshlrev_b32 v6, 9, v6\nv_and_b32 v7, 7, v1\nv_lshl_add_u32 v6, v7, 4, v6')
    a('s_mul_i32 s57, s50, %d\ns_lshl_b32 s58, s51, 6\ns_add_u32 s57, s57, s58' % RS)
    a('v_and_b32 v7, 3, v1\nv_lshlrev_b32 v7, 4, v7\nv_bfe_u32 v8, v1, 2, 1\nv_lshl_add_u32 v7, v8, 3, v7\nv_add_u32 v7, s57, v7')
    a('ds_read_b64 v[20:21], v7 offset:%d' % L_H)
    a('ds_read_b64 v[22:23], v7 offset:%d' % L_HN)
    a('s_lshl_b32 s57, s50, 2\nv_mov_b32 v8, s57')
    a('ds_read_b32 v24, v8 offset:%d' % L_STW)
    a('v_lshlrev_b32 v9, 3, v1\nv_mov_b32 v10, 0x%x\nv_cmp_gt_u32 vcc, 8, v1\nv_cndmask_b32 v9, v10, v9, vcc' % OOB)
    a('s_mul_i32 s58, s50, 1152\ns_lshl_b32 s57, s51, 6\ns_add_u32 s58, s58, s57')
    a('s_waitcnt lgkmcnt(0)')
    a('v_lshlrev_b32 v40, 16, v20\nv_and_b32 v41, s100, v20\nv_lshlrev_b32 v42, 16, v21\nv_and_b32 v43, s100, v21')
    a('v_lshlrev_b32 v44, 16, v22\nv_and_b32 v45, s100, v22\nv_lshlrev_b32 v46, 16, v23\nv_and_b32 v47, s100, v23')
    poll(['buffer_load_dwordx4 v[32:35], v6, s[36:39], s61 offen sc1', 'buffer_load_dwordx4 v[36:39], v6, s[36:39], s61 offen offset:256 sc1'], [range(32, 36), range(36, 40)], 19)
    stamp(12)
    for r in range(4): a('v_add_f32 %s, %s, %s' % (v(32 + r), v(32 + r), v(36 + r)))
    for r in range(4): a('v_add_f32_dpp %s, %s, %s row_ror:8 row_mask:0xf bank_mask:0xf' % (v(32 + r), v(32 + r), v(32 + r)))
    for r in range(4): a('v_mov_b32 %s, %s' % (v(36 + r), v(32 + r)))
    for r in range(4): a('v_permlane16_swap_b32 %s, %s' % (v(32 + r), v(36 + r)))
    for r in range(4): a('v_add_f32 %s, %s, %s' % (v(32 + r), v(32 + r), v(36 + r)))
    for r in range(4): a('v_mov_b32 %s, %s' % (v(36 + r), v(32 + r)))
    for r in range(4): a('v_permlane32_swap_b32 %s, %s' % (v(32 + r), v(36 + r)))
    for r in range(4): a('v_add_f32 %s, %s, %s' % (v(32 + r), v(32 + r), v(36 + r)))
    def rnd4(b):
        a('v_cvt_pk_bf16_f32 v36, %s, %s\nv_cvt_pk_bf16_f32 v37, %s, %s' % (v(b), v(b + 1), v(b + 2), v(b + 3)))
        a('v_lshlrev_b32 %s, 16, v36\nv_and_b32 %s, s100, v36\nv_lshlrev_b32 %s, 16, v37\nv_and_b32 %s, s100, v37' % (v(b), v(b + 1), v(b + 2), v(b + 3)))
    rnd4(32)
    for r in range(4): a('v_mul_f32 %s, v24, %s' % (v(32 + r), v(32 + r)))
    rnd4(32)
    for r in range(4): a('v_fmac_f32 %s, 0, %s' % (v(32 + r), v(44 + r)))
    for r in range(4): a('v_add_f32 %s, %s, %s' % (v(32 + r), v(44 + r), v(32 + r)))
    rnd4(32)
    for r in range(4): a('v_add_f32 %s, %s, %s' % (v(32 + r), v(40 + r), v(32 + r)))
    a('v_cvt_pk_bf16_f32 v36, v32, v33\nv_cvt_pk_bf16_f32 v37, v34, v35')
    a('buffer_store_dwordx2 v[36:37], v9, s[44:47], s58 offen')
    stamp(13)
    a('s_cmp_lg_u32 s2, 0')
    a('s_cbranch_scc1 L_fin')
    a('v_mov_b32 v36, s30\nv_mov_b32 v37, s31\nv_mov_b32 v9, 0')
    setexec(1, 0)
    a('buffer_store_dwordx2 v[36:37], v9, s[36:39], 0 offen sc1')
    fullexec()
    a('L_fin:')
    if dbgst:
        a('s_and_b32 s57, s48, 3')
        a('s_cmp_lg_u32 s57, 0')
        a('s_cbranch_scc1 L_end')
        a('s_waitcnt lgkmcnt(0)')
        a('v_mov_b32 v2, 0')
        a('s_cmp_lg_u32 s48, 0')
        a('s_cbranch_scc1 L_dk')
        a('s_not_b32 s57, s64')
        a('v_writelane_b32 v2, s57, 1')
        for word, st in ((2, 0), (3, 1), (4, 3), (7, 6)): a('v_writelane_b32 v2, s%d, %d' % (64 + 2 * st, word))
        a('s_branch L_dd')
        a('L_dk:')
        for word, st in ((5, 1), (6, 2), (9, 6), (10, 14), (11, 15), (12, 7), (13, 10), (14, 12), (15, 13)): a('v_writelane_b32 v2, s%d, %d' % (64 + 2 * st, word))
        a('L_dd:')
        a('v_lshlrev_b32 v3, 2, v1')
        setexec(0xfefe, 0)
        a('global_atomic_umax v3, v2, s[26:27]')
    elif stamps:
        a('s_and_b32 s57, s48, 3')
        a('s_cmp_lg_u32 s57, 0')
        a('s_cbranch_scc1 L_end')
        a('s_waitcnt lgkmcnt(0)')
        a('s_lshl_b32 s57, s2, 8\ns_lshl_b32 s58, s48, 5\ns_add_u32 s57, s57, s58\ns_add_u32 s57, s57, %d' % TSOFF)
        a('s_add_u32 s28, s28, s57\ns_addc_u32 s29, s29, 0')
        a('v_mov_b32 v1, 0')
        for i in range(16):
            a('v_mov_b32 v2, s%d\nv_mov_b32 v3, s%d' % (64 + 2 * i, 65 + 2 * i))
            a('global_store_dwordx2 v1, v[2:3], s[28:29] offset:%d' % (8 * i))
    a('L_end:')
    a.lines = insert_waits(a.lines)
    return kernel_file([(NAME + '_kernel', a.text(), 256, 102, 256)], [(NAME + '_kernel', 256, 512, LDS_BYTES)])

if __name__ == '__main__':
    open('k_main.s', 'w').write(gen())
    open('k_st.s', 'w').write(gen(stamps=True))
    open('k_dbg.s', 'w').write(gen(dbgst=True))
    open('k_st_glob.s', 'w').write(gen(stamps=True, force_global=True))
```

```python
import sys
from asmlib import *
from hazard import insert_waits

L_FLAG = 0; L_STW = 64; L_QS = 128; L_RED = 2304; L_P = 6400
RS = 1184
L_HN = L_P; L_H = L_P + 8 * RS; L_RW = L_P
L_W = 25600
L_G = L_W; L_U = L_G + 36864 + 32; L_D = L_W + 73984;
L_WQ = L_W; L_XN = L_W + 18432
LDS_BYTES = 136704
W_Q = 0x200000
W_CLR = 0x80000
W_O = W_CLR; W_ST = W_O + 131072; W_P1 = W_ST + 32768; W_H = W_P1 + 147456; W_A = W_H + 73728; W_U = W_A + 73728; W_P2 = W_U + 73728
CLR_LANES = 202
assert W_P2 + 294912 <= W_CLR + 256 * CLR_LANES * 16
WS_REC = 0x300000
OOB = 0x7ffffff0
LOG2E = 0x3fb8aa3b
SCALE = 0x3db504f3
POLL_MAX = 1 << 14
WARM_SLICES = 16

def v(a, n=1): return 'v%d' % a if n == 1 else 'v[%d:%d]' % (a, a + n - 1)

def gen(cap=0, cap_all=False, QPOS=5, gate=True, gate_wo=True, touch=False, down_early=True, thr=5, thr_wo=True, stamps=False, dbgst=False, kvflag='nt', wflag='nt', wqflag='nt', force_global=False):
    a = Asm()
    if dbgst: stamps = True
    def stamp(i):
        if stamps: a('s_memrealtime s[%d:%d]' % (64 + 2 * i, 65 + 2 * i))
    def srd(d, p, size):
        a('s_mov_b32 s%d, s%d\ns_mov_b32 s%d, s%d\ns_mov_b32 s%d, %d\ns_mov_b32 s%d, 0x20000' % (d, p, d + 1, p + 1, d + 2, size, d + 3))
    def setexec(lo, hi):
        a('s_mov_b32 exec_lo, 0x%x\ns_mov_b32 exec_hi, 0x%x' % (lo, hi))
    def fullexec(): a('s_mov_b64 exec, -1')
    def consts():
        a('s_mov_b32 s98, 0x05040100\ns_mov_b32 s99, 0x07060302\ns_mov_b32 s100, 0xffff0000')
        if stamps:
            for i in range(1, 16): a('s_mov_b64 s[%d:%d], 0' % (64 + 2 * i, 65 + 2 * i))
    def bf16r(dst, src, tmp=None):
        a('v_cvt_pk_bf16_f32 %s, %s, %s' % (v(dst), v(src), v(src)))
        a('v_lshlrev_b32 %s, 16, %s' % (v(dst), v(dst)))
    def store_lg(instr):
        lg = a.label('L_sg'); ld = a.label('L_sd')
        a('s_cmp_eq_u32 s96, 0')
        a('s_cbranch_scc1 %s' % lg)
        for i in instr: a(i)
        a('s_branch %s' % ld)
        a('%s:' % lg)
        for i in instr: a(i + ' sc1')
        a('%s:' % ld)
    def lds_spin(off, target, tmp=10):
        lp = a.label('L_spin'); dn = a.label('L_spd')
        a('s_mov_b32 s97, 0')
        a('%s:' % lp)
        a('ds_read_b32 %s, v4 offset:%d' % (v(tmp), off))
        a('s_add_u32 s97, s97, 1')
        a('s_waitcnt lgkmcnt(0)')
        a('v_readfirstlane_b32 s57, %s' % v(tmp))
        a('s_cmp_ge_u32 s97, %d' % (POLL_MAX * 8))
        a('s_cbranch_scc1 %s' % dn)
        a('s_cmp_lt_u32 s57, %d' % target)
        a('s_cbranch_scc1 %s' % lp)
        a('%s:' % dn)
    def throttle(k):
        if not thr or k < thr: return
        lab = a.label('L_thr')
        a('s_cmp_eq_u32 s96, 1')
        a('s_cbranch_scc1 %s' % lab)
        a('ds_read_b32 v12, v4 offset:%d' % (L_FLAG + 4))
        a('s_waitcnt vmcnt(%d) lgkmcnt(0)' % (thr - 1))
        a('v_readfirstlane_b32 s96, v12')
        a('s_cmp_ge_u32 s96, 5')
        a('s_cselect_b32 s96, 1, 0')
        a('%s:' % lab)
    def gate_w():
        if gate == 1: lds_spin(L_FLAG + 20, 4, 12)
        elif gate == 2: lds_spin(L_FLAG + 4, 5, 12)
    def get_mode(tmp):
        lds_spin(L_FLAG + 8, 1, tmp)
        a('s_lshr_b32 s96, s57, 1')
        if force_global: a('s_mov_b32 s96, 0')
    def poll(loads, groups, tmp, mid=None):
        lp = a.label('L_poll'); dn = a.label('L_pdone'); ck = a.label('L_pchk')
        a('s_mov_b32 s97, 0')
        if mid:
            for l in loads: a(l)
            mid()
            a('s_branch %s' % ck)
        a('%s:' % lp)
        for l in loads: a(l)
        a('%s:' % ck)
        n = len(loads)
        first = True
        for k, regs in enumerate(groups):
            a('s_waitcnt vmcnt(%d)' % (n - 1 - k))
            regs = list(regs)
            if first:
                if len(regs) == 1: a('v_mov_b32 %s, %s' % (v(tmp), v(regs.pop(0))))
                else: a('v_max_u32 %s, %s, %s' % (v(tmp), v(regs.pop(0)), v(regs.pop(0))))
                first = False
            while len(regs) >= 2:
                a('v_max3_u32 %s, %s, %s, %s' % (v(tmp), v(regs.pop(0)), v(regs.pop(0)), v(tmp)))
            if regs: a('v_max_u32 %s, %s, %s' % (v(tmp), v(regs.pop(0)), v(tmp)))
        a('v_cmp_eq_u32 vcc, -1, %s' % v(tmp))
        a('s_cbranch_vccz %s' % dn)
        a('s_add_u32 s97, s97, 1')
        a('s_cmp_lt_u32 s97, %d' % POLL_MAX)
        a('s_cbranch_scc1 %s' % lp)
        a('%s:' % dn)
    def layernorm(D, F, N, T):
        for k in range(9):
            a('v_lshlrev_b32 %s, 16, %s' % (v(F + 2 * k), v(D[k])))
            a('v_and_b32 %s, s100, %s' % (v(F + 2 * k + 1), v(D[k])))
        s0, s1, q0, q1, t0, t1, t2 = range(T, T + 7)
        a('v_pk_add_f32 %s, %s, %s' % (v(s0, 2), v(F, 2), v(F + 2, 2)))
        a('v_pk_mul_f32 %s, %s, %s' % (v(q0, 2), v(F, 2), v(F, 2)))
        a('v_pk_fma_f32 %s, %s, %s, %s' % (v(q0, 2), v(F + 2, 2), v(F + 2, 2), v(q0, 2)))
        for k in range(2, 9):
            a('v_pk_add_f32 %s, %s, %s' % (v(s0, 2), v(s0, 2), v(F + 2 * k, 2)))
            a('v_pk_fma_f32 %s, %s, %s, %s' % (v(q0, 2), v(F + 2 * k, 2), v(F + 2 * k, 2), v(q0, 2)))
        a('v_add_f32 %s, %s, %s' % (v(s0), v(s0), v(s1)))
        a('v_add_f32 %s, %s, %s' % (v(q0), v(q0), v(q1)))
        for r in (8, 4, 2, 1):
            a('v_add_f32_dpp %s, %s, %s row_ror:%d row_mask:0xf bank_mask:0xf' % (v(s0), v(s0), v(s0), r))
            a('v_add_f32_dpp %s, %s, %s row_ror:%d row_mask:0xf bank_mask:0xf' % (v(q0), v(q0), v(q0), r))
        a('v_mov_b32 %s, %s' % (v(s1), v(s0)))
        a('v_mov_b32 %s, %s' % (v(q1), v(q0)))
        a('v_permlane16_swap_b32 %s, %s' % (v(s0), v(s1)))
        a('v_permlane16_swap_b32 %s, %s' % (v(q0), v(q1)))
        a('v_add_f32 %s, %s, %s' % (v(s0), v(s0), v(s1)))
        a('v_add_f32 %s, %s, %s' % (v(q0), v(q0), v(q1)))
        inv = 0x3ae38e39
        a('v_mul_f32 %s, 0x%x, %s' % (v(s0), inv, v(s0)))
        a('v_mul_f32 %s, 0x%x, %s' % (v(q0), inv, v(q0)))
        a('v_fma_f32 %s, -%s, %s, %s' % (v(q0), v(s0), v(s0), v(q0)))
        a('v_max_f32 %s, 0, %s' % (v(q0), v(q0)))
        a('v_cvt_pk_bf16_f32 %s, %s, %s' % (v(t0), v(s0), v(q0)))
        a('v_lshlrev_b32 %s, 16, %s' % (v(s0), v(t0)))
        a('v_and_b32 %s, s100, %s' % (v(q0), v(t0)))
        a('v_add_f32 %s, 0x3727c5ac, %s' % (v(q0), v(q0)))
        sub = lambda k: a('v_pk_add_f32 %s, %s, %s op_sel_hi:[1,0] neg_lo:[0,1] neg_hi:[0,1]' % (v(F + 2 * k, 2), v(F + 2 * k, 2), v(s0, 2)))
        a('v_cvt_pk_bf16_f32 %s, %s, %s' % (v(q0), v(q0), v(q0)))
        sub(0)
        a('v_lshlrev_b32 %s, 16, %s' % (v(q0), v(q0)))
        sub(1)
        a('v_sqrt_f32 %s, %s' % (v(q0), v(q0)))
        sub(2); sub(3)
        a('v_cvt_pk_bf16_f32 %s, %s, %s' % (v(q0), v(q0), v(q0)))
        sub(4)
        a('v_lshlrev_b32 %s, 16, %s' % (v(q0), v(q0)))
        sub(5)
        a('v_rcp_f32 %s, %s' % (v(q0), v(q0)))
        sub(6); sub(7); sub(8)
        for k in range(9): a('v_cvt_pk_bf16_f32 %s, %s, %s' % (v(N[k]), v(F + 2 * k), v(F + 2 * k + 1)))
        for k in range(9):
            a('v_lshlrev_b32 %s, 16, %s' % (v(F + 2 * k), v(N[k])))
            a('v_and_b32 %s, s100, %s' % (v(F + 2 * k + 1), v(N[k])))
        for k in range(9): a('v_pk_mul_f32 %s, %s, %s op_sel_hi:[1,0]' % (v(F + 2 * k, 2), v(F + 2 * k, 2), v(q0, 2)))
        for k in range(9): a('v_cvt_pk_bf16_f32 %s, %s, %s' % (v(N[k]), v(F + 2 * k), v(F + 2 * k + 1)))
    def ln_addrs(dA, dB, t):
        a('v_lshrrev_b32 %s, 5, v1' % v(t))
        a('s_lshl_b32 s57, s49, 1')
        a('v_add_u32 %s, s57, %s' % (v(t), v(t)))
        a('v_mul_u32_u24 %s, %d, %s' % (v(t), RS, v(t)))
        a('v_bfe_u32 %s, v1, 2, 3' % v(dA))
        a('v_lshl_add_u32 %s, %s, 6, %s' % (v(dA), v(dA), v(t)))
        a('v_and_b32 %s, 1, v1' % v(dB))
        a('v_lshl_add_u32 %s, %s, 5, %s' % (v(dA), v(dB), v(dA)))
        a('v_lshl_add_u32 %s, %s, 2, %s' % (v(t), v(dB), v(t)))
        a('v_bfe_u32 %s, v1, 1, 1' % v(dB))
        a('v_lshl_add_u32 %s, %s, 3, %s' % (v(dA), v(dB), v(dA)))
        a('v_bfe_u32 %s, v1, 1, 2' % v(dB))
        a('v_lshl_add_u32 %s, %s, 4, %s' % (v(t), v(dB), v(t)))
        a('v_bfe_u32 %s, v1, 3, 1' % v(dB))
        a('v_lshl_add_u32 %s, %s, 3, %s' % (v(t), v(dB), v(t)))
        a('v_bfe_u32 %s, v1, 4, 1' % v(dB))
        a('v_lshl_add_u32 %s, %s, 6, %s' % (v(dB), v(dB), v(t)))
    def ln_write(base, dA, dB, N):
        o = base // 8
        a('ds_write_b64 %s, %s offset:%d' % (v(dA), v(N[0], 2), base))
        a('ds_write_b64 %s, %s offset:%d' % (v(dA), v(N[2], 2), base + 16))
        a('ds_write_b64 %s, %s offset:%d' % (v(dA), v(N[4], 2), base + 512))
        a('ds_write_b64 %s, %s offset:%d' % (v(dA), v(N[6], 2), base + 528))
        a('ds_write_b32 %s, %s offset:%d' % (v(dB), v(N[8]), base + 1024))
    def row_addrs(dA, dB):
        a('v_lshrrev_b32 %s, 5, v1' % v(dB))
        a('s_lshl_b32 s57, s49, 1')
        a('v_add_u32 %s, s57, %s' % (v(dB), v(dB)))
        a('v_mul_u32_u24 %s, 1152, %s' % (v(dB), v(dB)))
        a('v_and_b32 %s, 31, v1' % v(dA))
        a('v_lshl_add_u32 %s, %s, 2, %s' % (v(dB), v(dA), v(dB)))
        a('v_mul_u32_u24 %s, 12, %s' % (v(dA), v(dA)))
        a('v_add_u32 %s, %s, %s' % (v(dA), v(dA), v(dB)))

    a('L_start:')
    stamp(0)
    a('s_load_dwordx16 s[4:19], s[0:1], 0')
    a('s_load_dwordx8 s[20:27], s[0:1], 64')
    a('s_load_dwordx2 s[28:29], s[0:1], 96')
    a('s_cmp_ge_u32 s2, 256')
    a('s_cbranch_scc1 L_end')
    a('s_getpc_b64 s[62:63]')
    a('L_pc:')
    a('s_lshr_b32 s51, s2, 3')
    a('s_and_b32 s57, s51, %d\ns_lshl_b32 s57, s57, 11' % (WARM_SLICES - 1))
    a('v_lshl_add_u32 v11, v0, 2, s57')
    a('v_min_u32 v11, L_end-L_pc, v11')
    a('global_load_dword v25, v11, s[62:63]')
    a('v_and_b32 v1, 63, v0')
    a('v_lshrrev_b32 v2, 6, v0')
    a('v_mov_b32 v4, 0\nv_mov_b32 v5, 0')
    a('v_readfirstlane_b32 s48, v2')
    a('ds_write2_b64 v4, v[4:5], v[4:5] offset0:0 offset1:1')
    a('ds_write2_b64 v4, v[4:5], v[4:5] offset0:2 offset1:3')
    a('s_and_b32 s50, s2, 7')
    a('s_lshr_b32 s52, s51, 4\ns_lshl_b32 s57, s50, 1\ns_add_u32 s52, s52, s57')
    a('s_and_b32 s53, s51, 15\ns_lshr_b32 s54, s53, 1\ns_and_b32 s55, s53, 1')
    a('s_and_b32 s49, s48, 3')
    a('s_lshl_b32 s56, s54, 4\ns_add_u32 s56, s56, s52\ns_lshl_b32 s56, s56, 20')
    a('s_lshl_b32 s57, s55, 17\ns_add_u32 s56, s56, s57')
    a('s_lshl_b32 s57, s49, 15\ns_add_u32 s56, s56, s57')
    a('s_add_u32 s56, s56, %d' % (3072 * 256))
    a('v_and_b32 v2, 15, v1')
    a('v_lshrrev_b32 v3, 4, v1')
    a('v_lshlrev_b32 v6, 8, v2\nv_lshl_add_u32 v6, v3, 4, v6')
    row_addrs(8, 9)
    a('s_mov_b32 s34, %d\ns_mov_b32 s35, 0x20000' % (1 << 27))
    a('s_mov_b32 s42, 9216\ns_mov_b32 s43, 0x20000')
    a('s_sub_u32 s3, s51, 18\ns_cmp_ge_u32 s3, 9\ns_cselect_b32 s3, 1, 0')
    a('s_cmp_ge_u32 s48, 4')
    a('s_waitcnt lgkmcnt(0)')
    a('s_barrier')
    a('s_cbranch_scc0 L_vwave')
    a('s_setprio 2')
    a('s_mov_b32 s32, s6\ns_mov_b32 s33, s7')
    def capw(n):
        if cap and n >= cap and n % 2 == 0:
            if cap_all:
                a('s_waitcnt vmcnt(%d)' % (cap - 2))
            else:
                lab = a.label('L_cap')
                a('s_cbranch_scc0 %s' % lab)
                a('s_waitcnt vmcnt(%d)' % (cap - 2))
                a('%s:' % lab)
    def capscc():
        if cap and not cap_all: a('s_cmp_lg_u32 s3, 0')
    def kl(t):
        a('s_add_u32 s57, s56, %d' % (t * 4096))
        capscc()
        for s in range(4):
            capw(t * 4 + s)
            a('buffer_load_dwordx4 %s, v6, s[32:35], s57 offen offset:%d %s' % (v(128 + (t * 4 + s) * 4, 4), s * 64, kvflag))
    kl(0)
    a('s_load_dwordx2 s[30:31], s[28:29], 0')
    srd(36, 28, WS_REC)
    a('v_and_b32 v7, 31, v1\nv_lshlrev_b32 v17, 2, v7\nv_lshlrev_b32 v7, 4, v7\nv_lshrrev_b32 v8, 5, v1\nv_lshl_add_u32 v7, v8, 11, v7\nv_add_u32 v13, 4096, v7')
    a('s_lshl_b32 s57, s52, 3\ns_add_u32 s57, s57, s54\ns_lshl_b32 s57, s57, 13\ns_lshl_b32 s58, s49, 9\ns_add_u32 s57, s57, s58\ns_add_u32 s59, s57, %d' % W_Q)
    a('s_lshl_b32 s57, s49, 7\nv_add_u32 v17, s57, v17')
    for t in range(1, 8):
        kl(t)
        if t == QPOS:
            a('buffer_load_dwordx4 v[112:115], v7, s[36:39], s59 offen sc1')
            a('buffer_load_dwordx4 v[116:119], v13, s[36:39], s59 offen sc1')
    a('s_branch L_kwave')

    a('L_vwave:')
    a('s_setprio 3')
    a('s_mov_b32 s40, s4\ns_mov_b32 s41, s5')
    a('buffer_load_dwordx4 v[16:19], v8, s[40:43], 0 offen')
    a('buffer_load_dwordx4 v[20:23], v8, s[40:43], 0 offen offset:512')
    a('buffer_load_dword v24, v9, s[40:43], 0 offen offset:1024')
    srd(44, 10, 576 * 4096 * 2)
    a('v_lshrrev_b32 v10, 3, v1\nv_lshlrev_b32 v10, 13, v10\nv_bfe_u32 v11, v1, 4, 2\nv_lshlrev_b32 v11, 1, v11\nv_and_b32 v12, 7, v1\nv_xor_b32 v11, v11, v12')
    a('v_lshl_add_u32 v10, v11, 4, v10')
    a('s_lshr_b32 s61, s53, 2\ns_and_b32 s62, s53, 3')
    a('s_mul_i32 s58, s61, %d\ns_lshl_b32 s57, s49, 16\ns_add_u32 s58, s58, s57' % (144 * 8192))
    a('s_lshl_b32 s57, s52, 9\ns_add_u32 s58, s58, s57\ns_lshl_b32 s57, s62, 7\ns_add_u32 s58, s58, s57')
    a('s_lshl_b32 s59, s49, 10\ns_add_u32 s59, s59, %d' % L_WQ)
    for k in range(5):
        if k == 4:
            a('s_cmp_ge_u32 s49, 2')
            a('s_cbranch_scc1 L_wq4')
        a('s_mov_b32 m0, s59')
        a('s_add_u32 s59, s59, 4096')
        a('buffer_load_dwordx4 v10, s[44:47], s58 offen %s lds' % wqflag)
        a('s_add_u32 s58, s58, %d' % (32 * 8192))
    a('L_wq4:')
    a('s_load_dwordx2 s[30:31], s[28:29], 0')
    srd(36, 28, WS_REC)
    a('v_lshlrev_b32 v11, 4, v0\nv_mov_b32 v10, 0x%x\nv_cmp_gt_u32 vcc, %d, v0\nv_cndmask_b32 v11, v10, v11, vcc' % (OOB, CLR_LANES))
    a('v_mov_b32 v12, -1\nv_mov_b32 v13, -1\nv_mov_b32 v14, -1\nv_mov_b32 v15, -1')
    a('s_mul_i32 s60, s2, %d\ns_add_u32 s60, s60, %d' % (CLR_LANES * 16, W_CLR))
    a('buffer_store_dwordx4 v[12:15], v11, s[36:39], s60 offen sc1')
    a('s_mov_b32 s32, s8\ns_mov_b32 s33, s9')
    consts()
    a('v_lshrrev_b32 v10, 5, v1\ns_lshl_b32 s57, s49, 1\nv_add_u32 v10, s57, v10\nv_lshlrev_b32 v10, 5, v10')
    a('v_add_u32 v8, v8, v10\nv_add_u32 v9, v9, v10')
    a('v_bfe_u32 v6, v1, 2, 2\nv_lshl_add_u32 v6, v3, 2, v6')
    a('v_bfe_u32 v7, v6, 1, 2\nv_xor_b32 v7, s49, v7\nv_lshlrev_b32 v7, 5, v7\nv_lshl_add_u32 v6, v6, 7, v7')
    a('v_and_b32 v7, 3, v1\nv_lshl_add_u32 v6, v7, 3, v6')
    a('v_and_b32 v7, 7, v1\nv_mul_u32_u24 v7, %d, v7\nv_lshl_add_u32 v7, v3, 3, v7\ns_mul_i32 s57, s61, 288\nv_add_u32 v7, s57, v7' % RS)
    a('s_waitcnt vmcnt(5)')
    stamp(1)
    layernorm([16, 17, 18, 19, 20, 21, 22, 23, 24], 34, [52, 53, 54, 55, 56, 57, 58, 59, 60], 26)
    a('ds_write_b128 v8, v[52:55] offset:%d' % L_XN)
    a('ds_write_b128 v8, v[56:59] offset:%d' % (L_XN + 512))
    a('ds_write_b32 v9, v60 offset:%d' % (L_XN + 1024))
    a('v_mov_b32 v4, 0\nv_mov_b32 v5, 1')
    a('s_waitcnt vmcnt(0) lgkmcnt(0)')
    stamp(2)
    setexec(1, 0)
    a('ds_add_u32 v4, v5 offset:%d' % (L_FLAG + 0))
    fullexec()
    a('s_add_u32 s30, s30, 1')
    a('s_getreg_b32 s57, hwreg(HW_REG_XCC_ID, 0, 4)')
    a('s_mul_i32 s58, s57, s57\ns_lshl_b32 s58, s58, 16\ns_lshl_b32 s57, s57, 8\ns_add_u32 s57, s57, s58\ns_add_u32 s57, s57, 1')
    a('v_mov_b32 v8, s57')
    a('s_lshl_b32 s58, s50, 5')
    a('v_mov_b32 v9, s58')
    QA = 64; QB = 64 + 20
    a('v_mov_b32 %s, 0\nv_mov_b32 %s, 0\nv_mov_b32 %s, 0\nv_mov_b32 %s, 0' % (v(QA + 18), v(QA + 19), v(QB + 18), v(QB + 19)))
    a('v_and_b32 v11, 7, v1\nv_lshlrev_b32 v11, 13, v11\nv_lshl_add_u32 v11, v3, 5, v11\nv_and_b32 v10, 8, v1\nv_lshl_add_u32 v11, v10, 1, v11')
    a('s_lshl_b32 s57, s52, 16\ns_lshl_b32 s58, s61, 11\ns_add_u32 s57, s57, s58\ns_lshl_b32 s58, s62, 9\ns_add_u32 s57, s57, s58')
    a('s_lshl_b32 s58, s49, 7\ns_add_u32 s57, s57, s58\ns_add_u32 s59, s57, %d' % W_Q)
    a('v_mov_b32 v33, s30\nv_mov_b32 v35, s30')
    a('v_cmp_gt_u32 s[60:61], 8, v2')
    lds_spin(L_FLAG + 0, 4)
    for s in range(5):
        a('ds_read_b64_tr_b16 %s, v6 offset:%d' % (v(QA + 4 * s, 2), L_WQ + s * 4096))
        a('ds_read_b64 %s, v7 offset:%d' % (v(QB + 4 * s, 2), L_XN + s * 64))
        if s < 4:
            a('ds_read_b64_tr_b16 %s, v6 offset:%d' % (v(QA + 4 * s + 2, 2), L_WQ + s * 4096 + 2048))
            a('ds_read_b64 %s, v7 offset:%d' % (v(QB + 4 * s + 2, 2), L_XN + s * 64 + 32))
        if s == 2: a('s_waitcnt lgkmcnt(8)')
    a('s_cmp_lg_u32 s48, 0')
    a('s_cbranch_scc1 L_noatom')
    setexec(1, 0)
    a('global_atomic_add v9, v8, s[26:27]')
    fullexec()
    a('L_noatom:')
    for t in range(5):
        a('s_waitcnt lgkmcnt(%d)' % max(0, 14 - 4 * t))
        a('v_mfma_f32_16x16x32_bf16 v[28:31], %s, %s, %s' % (v(QA + 4 * t, 4), v(QB + 4 * t, 4), '0' if t == 0 else 'v[28:31]'))
    a('v_cndmask_b32 v32, v30, v28, s[60:61]\nv_cndmask_b32 v34, v31, v29, s[60:61]')
    a('buffer_store_dwordx4 v[32:35], v11, s[36:39], s59 offen sc1')
    stamp(3)
    if cap: lds_spin(L_FLAG + 24, 4)
    a('s_setprio 1')
    a('v_lshlrev_b32 v6, 10, v3\nv_lshl_add_u32 v6, v2, 4, v6')
    for blk in range(4):
        for j in range(8):
            if j % 4 == 0:
                a('s_add_u32 s57, s56, %d' % (blk * 8192 + (j >> 2) * 4096))
                capscc()
            capw(blk * 8 + j)
            a('buffer_load_dwordx4 %s, v6, s[32:35], s57 offen offset:%d %s' % (v(128 + (blk * 8 + j) * 4, 4), (j & 3) * 256, kvflag))
    a('s_setprio 3')
    setexec(1, 0)
    a('ds_add_u32 v4, v5 offset:%d' % (L_FLAG + 20))
    fullexec()
    stamp(4)
    a('s_lshl_b32 s57, s49, 12\ns_add_u32 s57, s57, %d' % L_P)
    a('v_and_b32 v7, 1, v1\nv_lshlrev_b32 v8, 8, v3\nv_add_u32 v8, s57, v8')
    a('v_lshl_add_u32 v9, v7, 4, v8')
    a('v_add_u32 v8, 32, v8')
    a('v_lshrrev_b32 v27, 1, v2')
    for i in range(8):
        a('v_cmp_eq_u32 vcc, %d, v27' % i)
        a('v_cndmask_b32 %s, v8, v9, vcc' % v(16 + i))
    a('v_lshlrev_b32 v11, 3, v7')
    lds_spin(L_FLAG + 16, 4)
    stamp(5)
    for w in range(4): a('ds_read_b64 %s, v11 offset:%d' % (v(32 + 2 * w, 2), L_STW + w * 16))
    a('s_lshl_b32 s57, s49, 4')
    a('v_add_u32 v13, s57, v11')
    a('ds_read_b32 v40, v13 offset:%d' % L_STW)
    PB = [96, 64 - 32]
    for i in range(8): a('ds_read_b128 %s, %s' % (v(PB[0] + 4 * i, 4), v(16 + i)))
    a('s_waitcnt lgkmcnt(8)')
    a('v_max3_f32 v41, v32, v34, v36\nv_max_f32 v41, v41, v38')
    a('s_mov_b32 s57, 0x%x' % LOG2E)
    for w in range(4):
        a('v_sub_f32 %s, %s, v41' % (v(32 + 2 * w), v(32 + 2 * w)))
        a('v_mul_f32 %s, s57, %s' % (v(32 + 2 * w), v(32 + 2 * w)))
        a('v_exp_f32 %s, %s' % (v(32 + 2 * w), v(32 + 2 * w)))
    a('v_sub_f32 v40, v40, v41\nv_mul_f32 v40, s57, v40\nv_exp_f32 v40, v40')
    a('v_mul_f32 v42, v32, v33\nv_fmac_f32 v42, v34, v35\nv_fmac_f32 v42, v36, v37\nv_fmac_f32 v42, v38, v39')
    a('v_rcp_f32 v43, v42')
    a('v_mul_f32 v26, v40, v43')
    a('v_min_u32 v41, -2, v41\nv_min_u32 v42, -2, v42')
    a('v_mov_b32_dpp v8, v41 quad_perm:[0,0,2,2] row_mask:0xf bank_mask:0xf')
    a('v_mov_b32_dpp v9, v42 quad_perm:[0,0,2,2] row_mask:0xf bank_mask:0xf')
    a('v_mov_b32_dpp v10, v41 quad_perm:[1,1,3,3] row_mask:0xf bank_mask:0xf')
    a('v_mov_b32_dpp v11, v42 quad_perm:[1,1,3,3] row_mask:0xf bank_mask:0xf')
    a('v_lshlrev_b32 v12, 12, v7')
    a('v_lshl_add_u32 v12, v3, 6, v12')
    a('v_lshl_add_u32 v12, v27, 3, v12')
    a('s_lshl_b32 s58, s50, 14\ns_and_b32 s57, s52, 1\ns_lshl_b32 s57, s57, 13\ns_add_u32 s58, s58, s57')
    a('s_lshl_b32 s57, s55, 3\ns_add_u32 s57, s57, s54')
    a('s_lshl_b32 s59, s57, 8\ns_add_u32 s58, s58, s59\ns_add_u32 s58, s58, %d' % W_O)
    a('s_lshl_b32 s59, s57, 7\ns_lshl_b32 s57, s52, 11\ns_add_u32 s59, s59, s57\ns_add_u32 s59, s59, %d' % W_ST)
    a('v_lshlrev_b32 v13, 4, v1\nv_mov_b32 v14, 0x%x\nv_cmp_gt_u32 vcc, 8, v1\nv_cndmask_b32 v13, v14, v13, vcc' % OOB)
    a('v_lshlrev_b32 v14, 4, v1')
    a('s_lshl_b32 s57, s49, 10')
    a('v_add_u32 v15, s57, v14')
    AS = 64
    for blk in range(4):
        cur = PB[blk & 1]; nxt = PB[(blk + 1) & 1]
        VD = 128 + blk * 32
        for jp in range(4):
            a('s_waitcnt vmcnt(%d)' % (32 - blk * 8 - 2 * jp - 2))
            for i in range(8):
                a('v_perm_b32 %s, %s, %s, %s' % (v(AS + 4 * i + jp), v(VD + (2 * jp + 1) * 4 + (i >> 1)), v(VD + 2 * jp * 4 + (i >> 1)), 's99' if i & 1 else 's98'))
        a('s_waitcnt lgkmcnt(0)')
        if blk < 3:
            for i in range(8): a('ds_read_b128 %s, %s offset:%d' % (v(nxt + 4 * i, 4), v(16 + i), (blk + 1) * 1024))
        for i in range(8):
            a('v_mfma_f32_16x16x32_bf16 v[28:31], %s, %s, %s' % (v(AS + 4 * i, 4), v(cur + 4 * i, 4), '0' if (blk == 0 and i == 0) else 'v[28:31]'))
    stamp(6)
    for r in range(4): a('v_mul_f32 %s, v26, %s' % (v(28 + r), v(28 + r)))
    a('ds_write_b128 v15, v[28:31] offset:%d' % L_RED)
    a('v_mov_b32 v5, 1')
    a('s_waitcnt lgkmcnt(0)')
    setexec(1, 0)
    a('ds_add_rtn_u32 v6, v4, v5 offset:%d' % (L_FLAG + 4))
    fullexec()
    a('s_waitcnt lgkmcnt(0)')
    a('v_readfirstlane_b32 s57, v6')
    a('s_cmp_lg_u32 s57, 3')
    a('s_cbranch_scc1 L_fin')
    for w in range(4): a('ds_read_b128 %s, v14 offset:%d' % (v(32 + 4 * w, 4), L_RED + w * 1024))
    a('s_waitcnt lgkmcnt(2)')
    for r in range(4): a('v_add_f32 %s, %s, %s' % (v(32 + r), v(32 + r), v(36 + r)))
    a('s_waitcnt lgkmcnt(0)')
    for r in range(4): a('v_add_f32 %s, %s, %s' % (v(40 + r), v(40 + r), v(44 + r)))
    for r in range(4): a('v_add_f32 %s, %s, %s' % (v(32 + r), v(32 + r), v(40 + r)))
    a('v_cvt_pk_bf16_f32 v36, v32, v33\nv_cvt_pk_bf16_f32 v37, v34, v35')
    a('v_min_u32 v36, -2, v36\nv_min_u32 v37, -2, v37')
    get_mode(6)
    store_lg(['buffer_store_dwordx2 v[36:37], v12, s[36:39], s58 offen', 'buffer_store_dwordx4 v[8:11], v13, s[36:39], s59 offen'])
    setexec(1, 0)
    a('ds_add_u32 v4, v5 offset:%d' % (L_FLAG + 4))
    stamp(7)
    a('s_branch L_fin')

    a('L_kwave:')
    consts()
    a('s_setprio 3')
    stamp(1)
    srd(40, 26, 256)
    a('v_lshlrev_b32 v10, 5, v1')
    a('buffer_load_dword v16, v10, s[40:43], 0 offen sc1')
    a('v_mov_b32 v4, 0\nv_mov_b32 v5, 1')
    if cap:
        setexec(1, 0)
        a('ds_add_u32 v4, v5 offset:%d' % (L_FLAG + 24))
        fullexec()
    a('v_and_b32 v18, 1, v1\nv_lshlrev_b32 v18, 8, v18\nv_lshl_add_u32 v18, v3, 4, v18')
    a('s_mov_b32 s58, 0x%x' % SCALE)
    a('s_waitcnt lgkmcnt(0)')
    a('s_add_u32 s30, s30, 1')
    a('s_mov_b32 s97, 0')
    a('s_waitcnt vmcnt(%d)' % (4 * (7 - QPOS) + 1))
    a('s_branch L_qchk')
    a('L_qpoll:')
    a('buffer_load_dwordx4 v[112:115], v7, s[36:39], s59 offen sc1')
    a('buffer_load_dwordx4 v[116:119], v13, s[36:39], s59 offen sc1')
    a('s_add_u32 s97, s97, 1')
    a('s_waitcnt vmcnt(0)')
    a('L_qchk:')
    a('v_xor_b32 v8, s30, v113\nv_xor_b32 v9, s30, v115\nv_xor_b32 v10, s30, v117\nv_xor_b32 v11, s30, v119')
    a('v_or3_b32 v8, v8, v9, v10\nv_or_b32 v8, v8, v11')
    a('v_cmp_ne_u32 vcc, 0, v8')
    a('s_cbranch_vccz L_qok')
    a('s_cmp_lt_u32 s97, %d' % POLL_MAX)
    a('s_cbranch_scc1 L_qpoll')
    a('L_qok:')
    if stamps: a('s_mov_b32 s74, s97\ns_mov_b32 s75, 0')
    a('v_add_f32 v8, v112, v116\nv_add_f32 v9, v114, v118')
    a('v_mov_b32 v10, v8\nv_mov_b32 v11, v9')
    a('v_permlane32_swap_b32 v8, v10\nv_permlane32_swap_b32 v9, v11')
    a('v_add_f32 v8, v8, v10\nv_add_f32 v9, v9, v11')
    a('v_cvt_pk_bf16_f32 v8, v8, v9')
    a('ds_write_b32 v17, v8 offset:%d' % L_QS)
    a('s_waitcnt lgkmcnt(0)')
    setexec(1, 0)
    a('ds_add_u32 v4, v5 offset:%d' % (L_FLAG + 12))
    fullexec()
    lds_spin(L_FLAG + 12, 4, 12)
    stamp(2)
    for s in range(4): a('ds_read_b128 %s, v18 offset:%d' % (v(96 + 4 * s, 4), L_QS + s * 64))
    a('s_waitcnt lgkmcnt(0)')
    S = 64
    def post(t):
        x = S + 4 * t
        a('v_cvt_pk_bf16_f32 v12, %s, %s\nv_cvt_pk_bf16_f32 v13, %s, %s' % (v(x), v(x + 1), v(x + 2), v(x + 3)))
        a('v_lshlrev_b32 %s, 16, v12\nv_and_b32 %s, s100, v12\nv_lshlrev_b32 %s, 16, v13\nv_and_b32 %s, s100, v13' % (v(x), v(x + 1), v(x + 2), v(x + 3)))
        for r in range(4): a('v_mul_f32 %s, s58, %s' % (v(x + r), v(x + r)))
        a('v_cvt_pk_bf16_f32 v12, %s, %s\nv_cvt_pk_bf16_f32 v13, %s, %s' % (v(x), v(x + 1), v(x + 2), v(x + 3)))
        a('v_lshlrev_b32 %s, 16, v12\nv_and_b32 %s, s100, v12\nv_lshlrev_b32 %s, 16, v13\nv_and_b32 %s, s100, v13' % (v(x), v(x + 1), v(x + 2), v(x + 3)))
        if t == 0:
            a('v_max_f32 v8, %s, %s\nv_max_f32 v9, %s, %s' % (v(x), v(x + 1), v(x + 2), v(x + 3)))
        else:
            a('v_max3_f32 v8, %s, %s, v8\nv_max3_f32 v9, %s, %s, v9' % (v(x), v(x + 1), v(x + 2), v(x + 3)))
    for t in range(8):
        if t > QPOS: a('s_waitcnt vmcnt(%d)' % (29 - 4 * t if t < 7 else 0))
        elif t == 7: a('s_waitcnt vmcnt(0)')
        for s in range(4):
            a('v_mfma_f32_16x16x32_bf16 %s, %s, %s, %s' % (v(S + 4 * t, 4), v(128 + (t * 4 + s) * 4, 4), v(96 + 4 * s, 4), '0' if s == 0 else v(S + 4 * t, 4)))
        if t >= 1: post(t - 1)
    post(7)
    a('v_max_f32 v8, v8, v9')
    a('v_mov_b32 v9, v8\nv_permlane16_swap_b32 v8, v9\nv_max_f32 v8, v8, v9')
    a('v_mov_b32 v9, v8\nv_permlane32_swap_b32 v8, v9\nv_max_f32 v8, v8, v9')
    a('s_mov_b32 s57, 0x%x' % LOG2E)
    for k in range(32): a('v_sub_f32 %s, %s, v8' % (v(S + k), v(S + k)))
    for k in range(32): a('v_mul_f32 %s, s57, %s' % (v(S + k), v(S + k)))
    for k in range(32): a('v_exp_f32 %s, %s' % (v(S + k), v(S + k)))
    for p in range(16): a('v_cvt_pk_bf16_f32 %s, %s, %s' % (v(96 + p), v(S + 2 * p), v(S + 2 * p + 1)))
    a('s_lshl_b32 s57, s49, 12')
    a('v_lshl_add_u32 v10, v1, 4, s57')
    a('v_mov_b32 v12, 0\nv_mov_b32 v13, 0\nv_mov_b32 v14, 0\nv_mov_b32 v15, 0')
    setexec(0x00030003, 0x00030003)
    for blk in range(4): a('ds_write_b128 v10, %s offset:%d' % (v(96 + 4 * blk, 4), L_P + blk * 1024))
    setexec(0x00040004, 0x00040004)
    for blk in range(4): a('ds_write_b128 v10, v[12:15] offset:%d' % (L_P + blk * 1024))
    fullexec()
    for st in (16, 8, 4, 2):
        for k in range(0, st, 2): a('v_pk_add_f32 %s, %s, %s' % (v(S + k, 2), v(S + k, 2), v(S + st + k, 2)))
    a('v_add_f32 v9, %s, %s' % (v(S), v(S + 1)))
    a('v_mov_b32 v10, v9\nv_permlane16_swap_b32 v9, v10\nv_add_f32 v9, v9, v10')
    a('v_mov_b32 v10, v9\nv_permlane32_swap_b32 v9, v10\nv_add_f32 v9, v9, v10')
    a('s_lshl_b32 s57, s49, 4')
    a('v_lshl_add_u32 v11, v1, 3, s57')
    setexec(3, 0)
    a('ds_write_b64 v11, v[8:9] offset:%d' % L_STW)
    a('s_waitcnt lgkmcnt(0)')
    setexec(1, 0)
    a('ds_add_u32 v4, v5 offset:%d' % (L_FLAG + 16))
    fullexec()
    stamp(3)
    a('s_cmp_lg_u32 s49, 0')
    a('s_cbranch_scc1 L_kb1')
    a('v_lshlrev_b32 v10, 5, v1')
    a('s_getreg_b32 s57, hwreg(HW_REG_XCC_ID, 0, 4)')
    a('s_mul_i32 s58, s57, s57\ns_lshl_b32 s58, s58, 16\ns_lshl_b32 s57, s57, 8\ns_add_u32 s57, s57, s58\ns_add_u32 s57, s57, 1\ns_lshl_b32 s58, s57, 5')
    a('s_mov_b32 s97, 0')
    a('s_branch L_cchk')
    a('L_cpoll:')
    a('buffer_load_dword v16, v10, s[40:43], 0 offen sc1')
    a('L_cchk:')
    a('s_add_u32 s97, s97, 1')
    a('s_waitcnt vmcnt(0)')
    a('v_and_b32 v12, 63, v16')
    a('v_cmp_ne_u32 vcc, 32, v12')
    a('s_and_b32 s57, vcc_lo, 0xff')
    a('s_cbranch_scc0 L_cok')
    a('s_cmp_lt_u32 s97, %d' % POLL_MAX)
    a('s_cbranch_scc1 L_cpoll')
    a('L_cok:')
    a('v_readlane_b32 s57, v16, s50')
    a('s_cmp_eq_u32 s57, s58')
    a('s_cselect_b32 s57, 2, 1')
    a('v_mov_b32 v11, s57')
    if touch and not force_global:
        a('s_cbranch_scc0 L_notouch')
        a('v_mov_b32 v12, -1\nv_mov_b32 v13, -1\nv_mov_b32 v14, -1\nv_mov_b32 v15, -1')
        a('s_lshl_b32 s58, s50, 14\ns_and_b32 s57, s52, 1\ns_lshl_b32 s57, s57, 13\ns_add_u32 s58, s58, s57')
        a('s_lshl_b32 s57, s55, 3\ns_add_u32 s57, s57, s54')
        a('s_lshl_b32 s59, s57, 8\ns_add_u32 s58, s58, s59\ns_add_u32 s58, s58, %d' % W_O)
        a('s_lshl_b32 s59, s57, 7\ns_lshl_b32 s57, s52, 11\ns_add_u32 s59, s59, s57\ns_add_u32 s59, s59, %d' % W_ST)
        a('v_lshlrev_b32 v6, 12, v3\nv_lshl_add_u32 v6, v2, 4, v6\nv_lshlrev_b32 v7, 4, v1')
        setexec(0xffffffff, 0)
        a('buffer_store_dwordx4 v[12:15], v6, s[36:39], s58 offen')
        setexec(0xff, 0)
        a('buffer_store_dwordx4 v[12:15], v7, s[36:39], s59 offen')
        a('s_mul_i32 s58, s50, 9216')
        a('s_cmp_lt_u32 s51, 18')
        a('s_cbranch_scc0 L_touch_wo')
        setexec(0xffffffff, 0)
        a('s_lshl_b32 s57, s51, 9\ns_add_u32 s58, s58, s57\ns_add_u32 s58, s58, %d' % W_A)
        a('buffer_store_dwordx4 v[12:15], v7, s[36:39], s58 offen')
        a('s_branch L_touch_done')
        a('L_touch_wo:')
        a('s_cmp_ge_u32 s51, 27')
        a('s_cbranch_scc1 L_touch_done')
        fullexec()
        a('v_lshrrev_b32 v6, 3, v1\nv_mul_u32_u24 v6, 1152, v6\nv_and_b32 v7, 7, v1\nv_lshl_add_u32 v6, v7, 4, v6')
        a('s_sub_u32 s57, s51, 18\ns_lshl_b32 s57, s57, 7\ns_add_u32 s58, s58, s57\ns_add_u32 s58, s58, %d' % W_H)
        a('buffer_store_dwordx4 v[12:15], v6, s[36:39], s58 offen')
        a('L_touch_done:')
        fullexec()
        a('s_waitcnt vmcnt(0)')
        a('L_notouch:')
    a('ds_write_b32 v4, v11 offset:%d' % (L_FLAG + 8))
    a('L_kb1:')
    stamp(4)
    a('s_setprio 0')
    a('s_cmp_lt_u32 s51, 18')
    a('s_cbranch_scc1 L_ffn')
    a('s_cmp_ge_u32 s51, 27')
    a('s_cbranch_scc1 L_spare')

    DF = 176; AF = 64
    def down_setup(kh, LD):
        a('v_lshrrev_b32 v40, 3, v1\nv_mul_u32_u24 v40, 1152, v40\nv_bfe_u32 v41, v1, 4, 1\nv_lshlrev_b32 v41, 1, v41\nv_and_b32 v42, 7, v1\nv_xor_b32 v41, v41, v42')
        a('s_and_b32 s57, s49, 1\ns_lshl_b32 s57, s57, 2\nv_xor_b32 v41, s57, v41\nv_xor_b32 v42, 4, v41')
        a('v_lshl_add_u32 v41, v41, 4, v40\nv_lshl_add_u32 v40, v42, 4, v40')
        a('v_bfe_u32 v43, v1, 2, 2\nv_lshl_add_u32 v43, v3, 3, v43\nv_lshlrev_b32 v42, 7, v43')
        a('v_bfe_u32 v43, v1, 3, 2\nv_xor_b32 v43, s49, v43\nv_lshl_add_u32 v42, v43, 5, v42')
        a('v_and_b32 v43, 3, v1\nv_lshl_add_u32 v42, v43, 3, v42\nv_add_u32 v42, %d, v42' % LD)
        a('v_and_b32 v44, 7, v1\nv_lshlrev_b32 v43, 4, v44\nv_lshl_add_u32 v43, v3, 7, v43')
        a('v_lshlrev_b32 v44, 12, v44\nv_lshl_add_u32 v44, v3, 4, v44\nv_mov_b32 v45, 0x%x\nv_cmp_gt_u32 vcc, 8, v2\nv_cndmask_b32 v44, v45, v44, vcc' % OOB)
        a('s_mul_i32 s6, s50, 576\ns_mul_i32 s57, s49, 72\ns_add_u32 s6, s6, s57\ns_add_u32 s6, s6, %d\ns_mul_i32 s6, s6, 1152' % (kh * 288))
        a('s_lshl_b32 s57, s101, 7\ns_add_u32 s6, s6, s57')
        a('s_mul_i32 s7, s49, 9216\ns_add_u32 s7, s7, %d' % LD)
        a('s_mul_i32 s8, s50, 9216\ns_add_u32 s8, s8, %d\ns_add_u32 s9, s8, 4096' % (W_A + kh * 4608))
        a('s_lshl_b32 s10, s101, 15\ns_lshl_b32 s57, s50, 9\ns_add_u32 s10, s10, s57\ns_lshl_b32 s57, s49, 6\ns_add_u32 s10, s10, s57\ns_add_u32 s10, s10, %d' % (W_P2 + kh * 256))
    def down_loads(NB, thr_on):
        srd(40, 22, 4608 * 1152)
        for k in range(9):
            for nb in range(NB):
                if thr_on: throttle(k * NB + nb)
                if nb == 0: a('s_mov_b32 m0, s7')
                else: a('s_add_u32 s57, s7, %d\ns_mov_b32 m0, s57' % (36864 - 128))
                a('buffer_load_dwordx4 %s, s[40:43], s6 offen offset:%d %s lds' % ('v40' if k & 1 else 'v41', nb * 128, wflag))
            a('s_add_u32 s7, s7, 1024')
            a('s_add_u32 s6, s6, %d' % (8 * 1152))
    def down_compute(NB):
        for nb in range(NB):
            if nb: a('v_add_u32 v42, 36864, v42')
            for s in range(9):
                a('ds_read_b64_tr_b16 %s, v42 offset:%d' % (v(DF + 36 * nb + 4 * s, 2), s * 4096))
                a('ds_read_b64_tr_b16 %s, v42 offset:%d' % (v(DF + 36 * nb + 4 * s + 2, 2), s * 4096 + 512))
        poll(['buffer_load_dwordx4 %s, v43, s[36:39], %s offen offset:%d sc1' % (v(AF + 4 * s, 4), 's8' if s < 8 else 's9', (s & 7) * 512) for s in range(9)],
             [range(AF + 4 * s, AF + 4 * s + 4) for s in range(9)], 19)
        stamp(12)
        a('s_waitcnt lgkmcnt(0)')
        for s in range(9):
            for nb in range(NB):
                a('v_mfma_f32_16x16x32_bf16 %s, %s, %s, %s' % (v(32 + 4 * nb, 4), v(DF + 36 * nb + 4 * s, 4), v(AF + 4 * s, 4), '0' if s == 0 else v(32 + 4 * nb, 4)))
        for nb in range(NB):
            for r in range(4): a('v_min_u32 %s, -2, %s' % (v(32 + 4 * nb + r), v(32 + 4 * nb + r)))
            if nb: a('s_add_u32 s10, s10, 32768')
            a('buffer_store_dwordx4 %s, v44, s[36:39], s10 offen sc1' % v(32 + 4 * nb, 4))
        stamp(13)

    a('s_sub_u32 s61, s51, 18')
    srd(40, 12, 4096 * 1152)
    srd(44, 4, 9216)
    a('v_lshrrev_b32 v6, 3, v1\nv_mul_u32_u24 v6, 1152, v6')
    a('v_bfe_u32 v7, v1, 4, 1\nv_lshlrev_b32 v7, 1, v7\nv_and_b32 v8, 7, v1\nv_xor_b32 v7, v7, v8')
    a('v_lshl_add_u32 v6, v7, 4, v6')
    a('v_bfe_u32 v7, v1, 4, 1\ns_lshl_b32 s57, s49, 1\nv_add_u32 v7, s57, v7\nv_mul_u32_u24 v7, 1152, v7')
    a('v_lshl_add_u32 v7, v2, 3, v7')
    a('s_lshl_b32 s57, s61, 7')
    a('buffer_load_dwordx2 v[20:21], v7, s[44:47], s57 offen')
    a('v_mov_b32 v8, 0x%x\nv_cmp_gt_u32 vcc, 32, v1\nv_cndmask_b32 v22, v8, v7, vcc' % OOB)
    a('s_mul_i32 s62, s50, 9216\ns_add_u32 s62, s62, s57\ns_add_u32 s62, s62, %d' % W_H)
    a('s_mul_i32 s60, s49, %d\ns_add_u32 s60, s60, %d' % (16 * 1088, L_W))
    a('v_bfe_u32 v8, v1, 2, 2\nv_mul_u32_u24 v8, 1088, v8\nv_lshl_add_u32 v8, v3, 8, v8')
    a('v_and_b32 v9, 3, v1\nv_lshl_add_u32 v8, v9, 3, v8\nv_add_u32 v8, s60, v8')
    a('v_and_b32 v9, 1, v3\nv_lshl_add_u32 v10, v9, 5, v8')
    a('v_xor_b32 v9, 1, v9\nv_lshl_add_u32 v11, v9, 5, v8')
    a('v_lshlrev_b32 v13, 8, v2\nv_lshl_add_u32 v13, v3, 4, v13')
    a('v_lshlrev_b32 v14, 7, v2')
    a('s_lshl_b32 s11, s50, 14\ns_lshl_b32 s57, s49, 12\ns_add_u32 s11, s11, s57\ns_add_u32 s11, s11, %d' % W_O)
    a('s_lshl_b32 s14, s50, 12\ns_lshr_b32 s57, s49, 1\ns_lshl_b32 s57, s57, 11\ns_add_u32 s14, s14, s57\ns_and_b32 s57, s49, 1\ns_lshl_b32 s57, s57, 3\ns_add_u32 s14, s14, s57\ns_add_u32 s14, s14, %d' % W_ST)
    a('v_mul_u32_u24 v15, 272, v2\nv_lshl_add_u32 v15, v3, 4, v15\ns_mul_i32 s57, s49, 2176\nv_add_u32 v15, s57, v15')
    a('v_bfe_u32 v16, v1, 4, 1\ns_lshl_b32 s57, s49, 1\nv_add_u32 v16, s57, v16\nv_mul_u32_u24 v16, 272, v16\nv_lshl_add_u32 v16, v2, 4, v16')
    a('v_lshrrev_b32 v17, 5, v1\nv_mul_u32_u24 v17, 4352, v17\nv_add_u32 v16, v16, v17')
    a('v_and_b32 v17, 31, v1\nv_lshlrev_b32 v17, 4, v17')
    a('v_mov_b32 v8, 0x%x\nv_cmp_gt_u32 vcc, 32, v1\nv_cndmask_b32 v18, v8, v17, vcc' % OOB)
    a('v_lshrrev_b32 v19, 5, v1\nv_lshl_add_u32 v19, v19, 13, v17')
    a('v_add_u32 v23, 4096, v19')
    a('s_lshl_b32 s63, s61, 14\ns_lshl_b32 s57, s49, 9\ns_add_u32 s63, s63, s57\ns_add_u32 s63, s63, %d' % W_P1)
    a('s_lshl_b32 s57, s50, 11\ns_add_u32 s15, s63, s57')
    a('s_mov_b32 s101, s61')
    down_setup(0, L_W + 69632)
    a('s_lshl_b32 s57, s50, 2\ns_add_u32 s57, s57, s49\ns_mul_i32 s58, s57, %d' % (128 * 1152))
    a('s_lshl_b32 s57, s61, 7\ns_add_u32 s58, s58, s57')
    if gate_wo: lds_spin(L_FLAG + 20, 4, 12)
    a('s_mov_b32 s96, 0')
    for k in range(16):
        if thr_wo: throttle(k)
        a('s_mov_b32 m0, s60')
        a('s_add_u32 s60, s60, 1088')
        a('buffer_load_dwordx4 v6, s[40:43], s58 offen %s lds' % wflag)
        a('s_add_u32 s58, s58, %d' % (8 * 1152))
    a('s_setprio 3')
    get_mode(12)
    WF = 128; OF = 64
    def wo_mid():
        for s in range(4):
            a('s_waitcnt vmcnt(%d)' % (5 + 12 - 4 * s))
            if s == 3: stamp(6)
            for nt in range(4):
                ad = 10 if nt % 2 == 0 else 11
                off = s * 4 * 1088 + (nt >> 1) * 64
                a('ds_read_b64_tr_b16 %s, %s offset:%d' % (v(WF + (s * 4 + nt) * 4, 2), v(ad), off))
                a('ds_read_b64_tr_b16 %s, %s offset:%d' % (v(WF + (s * 4 + nt) * 4 + 2, 2), v(ad), off + 128))
            if s == 0: a('v_lshlrev_b32 v24, 16, v20\nv_and_b32 v25, s100, v20\nv_lshlrev_b32 v26, 16, v21\nv_and_b32 v27, s100, v21')
    poll(['buffer_load_dwordx2 v[28:29], v14, s[36:39], s14 offen sc1'] +
         ['buffer_load_dwordx4 %s, v13, s[36:39], s11 offen offset:%d sc1' % (v(OF + 4 * s, 4), s * 64) for s in range(4)],
         [[28, 29]] + [range(OF + 4 * s, OF + 4 * s + 4) for s in range(4)], 8, mid=wo_mid)
    stamp(14)
    a('s_waitcnt lgkmcnt(0)')
    DD = 96
    for s in range(4):
        for nt in range(4):
            a('v_mfma_f32_16x16x32_bf16 %s, %s, %s, %s' % (v(DD + 4 * nt, 4), v(WF + (s * 4 + nt) * 4, 4), v(OF + 4 * s, 4), '0' if s == 0 else v(DD + 4 * nt, 4)))
        if s == 0:
            a('v_max_f32_dpp v30, v28, v28 row_ror:8 row_mask:0xf bank_mask:0xf')
            a('s_mov_b32 s57, 0x%x' % LOG2E)
            a('v_sub_f32 v30, v28, v30\nv_mul_f32 v30, s57, v30\nv_exp_f32 v30, v30')
        if s == 1:
            a('v_mul_f32 v30, v30, v29')
            a('v_add_f32_dpp v31, v30, v30 row_ror:8 row_mask:0xf bank_mask:0xf')
            a('v_rcp_f32 v31, v31')
        if s == 2:
            a('v_mul_f32 v30, v30, v31')
    for k in range(0, 16, 2): a('v_pk_mul_f32 %s, %s, v[30:31] op_sel_hi:[1,0]' % (v(DD + k, 2), v(DD + k, 2)))
    for k in range(16): a('v_add_f32_dpp %s, %s, %s row_ror:8 row_mask:0xf bank_mask:0xf' % (v(DD + k), v(DD + k), v(DD + k)))
    setexec(0x00ff00ff, 0x00ff00ff)
    for nt in range(4): a('ds_write_b128 v15, %s offset:%d' % (v(DD + 4 * nt, 4), L_RW + nt * 64))
    fullexec()
    a('s_waitcnt lgkmcnt(0)')
    a('s_barrier')
    a('ds_read_b128 v[32:35], v16 offset:%d' % L_RW)
    a('ds_read_b128 v[36:39], v16 offset:%d' % (L_RW + 2176))
    a('s_waitcnt lgkmcnt(0)')
    for r in range(4): a('v_add_f32 %s, %s, %s' % (v(32 + r), v(32 + r), v(36 + r)))
    for r in range(4): a('v_mov_b32 %s, %s' % (v(36 + r), v(32 + r)))
    for r in range(4): a('v_permlane32_swap_b32 %s, %s' % (v(32 + r), v(36 + r)))
    for r in range(4): a('v_add_f32 %s, %s, %s' % (v(32 + r), v(32 + r), v(36 + r)))
    for r in range(4): a('v_min_u32 %s, -2, %s' % (v(32 + r), v(32 + r)))
    a('buffer_store_dwordx4 v[32:35], v18, s[36:39], s15 offen sc1')
    stamp(8)
    if down_early: down_loads(1, False)
    poll(['buffer_load_dwordx4 %s, v19, s[36:39], s63 offen offset:%d sc1' % (v(64 + 4 * u, 4), u * 2048) for u in range(2)] +
         ['buffer_load_dwordx4 %s, v23, s[36:39], s63 offen offset:%d sc1' % (v(72 + 4 * u, 4), u * 2048) for u in range(2)],
         [range(64 + 4 * u, 68 + 4 * u) for u in range(4)], 8)
    stamp(15)
    for r in range(4): a('v_add_f32 %s, %s, %s' % (v(64 + r), v(64 + r), v(68 + r)))
    for r in range(4): a('v_add_f32 %s, %s, %s' % (v(72 + r), v(72 + r), v(76 + r)))
    for r in range(4): a('v_add_f32 %s, %s, %s' % (v(64 + r), v(64 + r), v(72 + r)))
    for r in range(4): a('v_mov_b32 %s, %s' % (v(68 + r), v(64 + r)))
    for r in range(4): a('v_permlane32_swap_b32 %s, %s' % (v(64 + r), v(68 + r)))
    for r in range(4): a('v_add_f32 %s, %s, %s' % (v(64 + r), v(64 + r), v(68 + r)))
    a('v_cvt_pk_bf16_f32 v68, v64, v65\nv_cvt_pk_bf16_f32 v69, v66, v67')
    a('v_lshlrev_b32 v64, 16, v68\nv_and_b32 v65, s100, v68\nv_lshlrev_b32 v66, 16, v69\nv_and_b32 v67, s100, v69')
    for r in range(4): a('v_add_f32 %s, %s, %s' % (v(64 + r), v(64 + r), v(24 + r)))
    a('v_cvt_pk_bf16_f32 v68, v64, v65\nv_cvt_pk_bf16_f32 v69, v66, v67')
    a('v_min_u32 v68, -2, v68\nv_min_u32 v69, -2, v69')
    store_lg(['buffer_store_dwordx2 v[68:69], v22, s[36:39], s62 offen'])
    stamp(10)
    if not down_early:
        down_loads(1, False)
        a('s_waitcnt vmcnt(0)')
    a('s_barrier')
    stamp(11)
    down_compute(1)
    a('s_branch L_fin')

    a('L_spare:')
    a('s_sub_u32 s101, s51, 27\ns_lshl_b32 s101, s101, 1')
    down_setup(1, L_W)
    gate_w()
    a('s_mov_b32 s96, 0')
    down_loads(2, True)
    a('s_setprio 3')
    get_mode(12)
    a('s_waitcnt vmcnt(0)')
    a('s_barrier')
    stamp(6)
    down_compute(2)
    a('s_branch L_fin')

    a('L_ffn:')
    srd(44, 16, 1152)
    a('v_and_b32 v8, 31, v1\nv_lshlrev_b32 v9, 2, v8\nv_lshlrev_b32 v8, 4, v8')
    a('buffer_load_dwordx4 v[40:43], v8, s[44:47], 0 offen')
    a('buffer_load_dwordx4 v[44:47], v8, s[44:47], 0 offen offset:512')
    a('buffer_load_dword v48, v9, s[44:47], 0 offen offset:1024')
    a('s_cmp_ge_u32 s51, 9')
    a('s_cselect_b32 s40, s20, s18\ns_cselect_b32 s41, s21, s19\ns_cselect_b32 s4, 1, 0\ns_cselect_b32 s57, 9, 0')
    a('s_mov_b32 s42, %d\ns_mov_b32 s43, 0x20000' % (576 * 9216))
    a('s_sub_u32 s101, s51, s57')
    a('v_lshrrev_b32 v18, 3, v1\nv_mul_u32_u24 v18, 9216, v18\nv_bfe_u32 v8, v1, 4, 2\nv_lshlrev_b32 v8, 1, v8\nv_and_b32 v9, 7, v1\nv_xor_b32 v8, v8, v9\nv_lshl_add_u32 v18, v8, 4, v18')
    row_addrs(6, 7)
    ln_addrs(8, 9, 10)
    a('s_mul_i32 s62, s50, 9216\ns_lshl_b32 s57, s101, 10\ns_add_u32 s63, s62, s57\ns_lshl_b32 s57, s49, 8\ns_add_u32 s63, s63, s57')
    a('s_add_u32 s5, s63, %d\ns_add_u32 s63, s63, %d\ns_add_u32 s62, s62, %d' % (W_U, W_A, W_H))
    a('v_bfe_u32 v10, v1, 2, 2\nv_lshl_add_u32 v10, v3, 2, v10')
    a('v_bfe_u32 v11, v10, 1, 2\nv_xor_b32 v11, s49, v11\nv_lshlrev_b32 v11, 5, v11\nv_lshl_add_u32 v10, v10, 7, v11')
    a('v_and_b32 v11, 3, v1\nv_lshl_add_u32 v10, v11, 3, v10\nv_add_u32 v10, %d, v10\nv_add_u32 v11, 36864, v10' % L_G)
    a('v_and_b32 v13, 7, v1\nv_mul_u32_u24 v14, %d, v13\nv_lshl_add_u32 v14, v3, 4, v14' % RS)
    a('v_lshlrev_b32 v15, 4, v13\nv_bfe_u32 v16, v1, 5, 1\nv_lshl_add_u32 v15, v16, 7, v15\nv_bfe_u32 v16, v1, 4, 1\nv_lshl_add_u32 v15, v16, 3, v15')
    a('v_mov_b32 v17, 0x%x\nv_cmp_gt_u32 vcc, 8, v2\nv_cndmask_b32 v15, v17, v15, vcc' % OOB)
    a('s_lshr_b32 s61, s51, 1\ns_lshl_b32 s61, s61, 15\ns_lshl_b32 s57, s50, 12\ns_add_u32 s61, s61, s57\ns_and_b32 s57, s51, 1\ns_lshl_b32 s57, s57, 7\ns_add_u32 s61, s61, s57\ns_add_u32 s61, s61, %d' % W_P2)
    a('s_mul_i32 s57, s50, 9\ns_add_u32 s57, s57, s101\ns_lshl_b32 s57, s57, 7')
    a('s_mul_i32 s58, s49, %d\ns_add_u32 s58, s58, s57' % (144 * 9216))
    a('s_mul_i32 s59, s49, 18432\ns_add_u32 s59, s59, %d' % L_G)
    gate_w()
    a('s_mov_b32 s96, 0')
    for k in range(18):
        throttle(k)
        a('s_mov_b32 m0, s59')
        a('s_add_u32 s59, s59, 1024')
        a('buffer_load_dwordx4 v18, s[40:43], s58 offen %s lds' % wflag)
        a('s_add_u32 s58, s58, %d' % (8 * 9216))
    a('s_setprio 3')
    srd(44, 24, 9216)
    get_mode(12)
    GF = 128
    def ffn_mid():
        a('s_waitcnt vmcnt(3)')
        a('s_barrier')
        stamp(6)
        for s in range(18):
            ad = 'v10' if s < 9 else 'v11'
            a('ds_read_b64_tr_b16 %s, %s offset:%d' % (v(GF + 4 * s, 2), ad, (s % 9) * 4096))
            a('ds_read_b64_tr_b16 %s, %s offset:%d' % (v(GF + 4 * s + 2, 2), ad, (s % 9) * 4096 + 2048))
    poll(['buffer_load_dwordx4 v[20:23], v6, s[36:39], s62 offen sc1',
          'buffer_load_dwordx4 v[24:27], v6, s[36:39], s62 offen offset:512 sc1',
          'buffer_load_dword v28, v7, s[36:39], s62 offen offset:1024 sc1'],
         [range(20, 24), range(24, 28), [28]], 19, mid=ffn_mid)
    stamp(7)
    N = [52, 53, 54, 55, 56, 57, 58, 59, 60]
    layernorm([20, 21, 22, 23, 24, 25, 26, 27, 28], 64, N, 30)
    ln_write(L_HN, 8, 9, N)
    a('s_waitcnt lgkmcnt(0)')
    a('s_barrier')
    stamp(8)
    HF = 64
    def hf(s): return HF + 4 * s if s < 16 else 200 + 4 * (s - 16)
    for s in range(18):
        a('ds_read_b128 %s, v14 offset:%d' % (v(hf(s), 4), L_HN + s * 64))
        if s >= 6:
            t = s - 6
            a('s_waitcnt lgkmcnt(6)')
            a('v_mfma_f32_16x16x32_bf16 v[32:35], %s, %s, %s' % (v(GF + 4 * t, 4), v(hf(t), 4), '0' if t == 0 else 'v[32:35]'))
    for t in range(12, 18):
        a('s_waitcnt lgkmcnt(%d)' % (17 - t))
        a('v_mfma_f32_16x16x32_bf16 v[32:35], %s, %s, v[32:35]' % (v(GF + 4 * t, 4), v(hf(t), 4)))
    a('s_mov_b32 s57, 0x%x' % (LOG2E | 0x80000000))
    a('v_cvt_pk_bf16_f32 v36, v32, v33\nv_cvt_pk_bf16_f32 v37, v34, v35')
    a('s_cmp_eq_u32 s4, 0')
    a('s_cbranch_scc1 L_gate')
    a('v_min_u32 v36, -2, v36\nv_min_u32 v37, -2, v37')
    store_lg(['buffer_store_dwordx2 v[36:37], v15, s[36:39], s5 offen'])
    stamp(9)
    a('s_branch L_gu_done')
    a('L_gate:')
    def gate_mid():
        a('v_lshlrev_b32 v64, 16, v36\nv_and_b32 v65, s100, v36\nv_lshlrev_b32 v66, 16, v37\nv_and_b32 v67, s100, v37')
        for r in range(4): a('v_mul_f32 %s, s57, %s' % (v(68 + r), v(64 + r)))
        for r in range(4): a('v_exp_f32 %s, %s' % (v(68 + r), v(68 + r)))
        for r in range(4): a('v_add_f32 %s, 1.0, %s' % (v(68 + r), v(68 + r)))
        for r in range(4): a('v_rcp_f32 %s, %s' % (v(68 + r), v(68 + r)))
        for r in range(4): a('v_mul_f32 %s, %s, %s' % (v(64 + r), v(64 + r), v(68 + r)))
        a('v_cvt_pk_bf16_f32 v36, v64, v65\nv_cvt_pk_bf16_f32 v37, v66, v67')
        a('v_lshlrev_b32 v64, 16, v36\nv_and_b32 v65, s100, v36\nv_lshlrev_b32 v66, 16, v37\nv_and_b32 v67, s100, v37')
    gate_mid()
    poll(['buffer_load_dwordx2 v[38:39], v15, s[36:39], s5 offen sc1'], [[38, 39]], 19)
    stamp(10)
    a('v_lshlrev_b32 v72, 16, v38\nv_and_b32 v73, s100, v38\nv_lshlrev_b32 v74, 16, v39\nv_and_b32 v75, s100, v39')
    for r in range(4): a('v_mul_f32 %s, %s, %s' % (v(64 + r), v(64 + r), v(72 + r)))
    a('v_cvt_pk_bf16_f32 v36, v64, v65\nv_cvt_pk_bf16_f32 v37, v66, v67')
    a('v_min_u32 v36, -2, v36\nv_min_u32 v37, -2, v37')
    store_lg(['buffer_store_dwordx2 v[36:37], v15, s[36:39], s63 offen'])
    stamp(9)
    a('L_gu_done:')
    a('s_lshr_b32 s58, s50, 1')
    a('s_cmp_lg_u32 s49, s58')
    a('s_cbranch_scc1 L_fin')
    ln_write(L_H, 8, 9, [20, 21, 22, 23, 24, 25, 26, 27, 28])
    a('v_dot2_f32_bf16 v36, v52, v40, 0')
    for k in range(1, 9): a('v_dot2_f32_bf16 v36, %s, %s, v36' % (v(N[k]), v(40 + k)))
    for r in (8, 4, 2, 1):
        a('v_add_f32_dpp v36, v36, v36 row_ror:%d row_mask:0xf bank_mask:0xf' % r)
    a('v_mov_b32 v37, v36\nv_permlane16_swap_b32 v36, v37\nv_add_f32 v36, v36, v37')
    bf16r(36, 36)
    a('v_mul_f32 v36, s57, v36\nv_exp_f32 v36, v36\nv_add_f32 v36, 1.0, v36\nv_rcp_f32 v36, v36')
    bf16r(36, 36)
    a('s_and_b32 s57, s50, 1\ns_lshl_b32 s57, s57, 5')
    a('v_readlane_b32 s59, v36, s57')
    a('v_lshrrev_b32 v6, 3, v1\nv_lshlrev_b32 v6, 9, v6\nv_and_b32 v7, 7, v1\nv_lshl_add_u32 v6, v7, 4, v6')
    a('s_mul_i32 s57, s50, %d\ns_lshl_b32 s58, s51, 6\ns_add_u32 s57, s57, s58' % RS)
    a('v_and_b32 v7, 3, v1\nv_lshlrev_b32 v7, 4, v7\nv_bfe_u32 v8, v1, 2, 1\nv_lshl_add_u32 v7, v8, 3, v7\nv_add_u32 v7, s57, v7')
    a('ds_read_b64 v[20:21], v7 offset:%d' % L_H)
    a('ds_read_b64 v[22:23], v7 offset:%d' % L_HN)
    a('v_lshlrev_b32 v9, 3, v1\nv_mov_b32 v10, 0x%x\nv_cmp_gt_u32 vcc, 8, v1\nv_cndmask_b32 v9, v10, v9, vcc' % OOB)
    a('s_mul_i32 s58, s50, 1152\ns_lshl_b32 s57, s51, 6\ns_add_u32 s58, s58, s57')
    a('s_waitcnt lgkmcnt(0)')
    a('v_lshlrev_b32 v40, 16, v20\nv_and_b32 v41, s100, v20\nv_lshlrev_b32 v42, 16, v21\nv_and_b32 v43, s100, v21')
    a('v_lshlrev_b32 v44, 16, v22\nv_and_b32 v45, s100, v22\nv_lshlrev_b32 v46, 16, v23\nv_and_b32 v47, s100, v23')
    poll(['buffer_load_dwordx4 v[32:35], v6, s[36:39], s61 offen sc1', 'buffer_load_dwordx4 v[36:39], v6, s[36:39], s61 offen offset:256 sc1'], [range(32, 36), range(36, 40)], 19)
    stamp(12)
    for r in range(4): a('v_add_f32 %s, %s, %s' % (v(32 + r), v(32 + r), v(36 + r)))
    for r in range(4): a('v_add_f32_dpp %s, %s, %s row_ror:8 row_mask:0xf bank_mask:0xf' % (v(32 + r), v(32 + r), v(32 + r)))
    for r in range(4): a('v_mov_b32 %s, %s' % (v(36 + r), v(32 + r)))
    for r in range(4): a('v_permlane16_swap_b32 %s, %s' % (v(32 + r), v(36 + r)))
    for r in range(4): a('v_add_f32 %s, %s, %s' % (v(32 + r), v(32 + r), v(36 + r)))
    for r in range(4): a('v_mov_b32 %s, %s' % (v(36 + r), v(32 + r)))
    for r in range(4): a('v_permlane32_swap_b32 %s, %s' % (v(32 + r), v(36 + r)))
    for r in range(4): a('v_add_f32 %s, %s, %s' % (v(32 + r), v(32 + r), v(36 + r)))
    def rnd4(b):
        a('v_cvt_pk_bf16_f32 v36, %s, %s\nv_cvt_pk_bf16_f32 v37, %s, %s' % (v(b), v(b + 1), v(b + 2), v(b + 3)))
        a('v_lshlrev_b32 %s, 16, v36\nv_and_b32 %s, s100, v36\nv_lshlrev_b32 %s, 16, v37\nv_and_b32 %s, s100, v37' % (v(b), v(b + 1), v(b + 2), v(b + 3)))
    rnd4(32)
    for r in range(4): a('v_mul_f32 %s, s59, %s' % (v(32 + r), v(32 + r)))
    rnd4(32)
    for r in range(4): a('v_fmac_f32 %s, 0, %s' % (v(32 + r), v(44 + r)))
    for r in range(4): a('v_add_f32 %s, %s, %s' % (v(32 + r), v(44 + r), v(32 + r)))
    rnd4(32)
    for r in range(4): a('v_add_f32 %s, %s, %s' % (v(32 + r), v(40 + r), v(32 + r)))
    a('v_cvt_pk_bf16_f32 v36, v32, v33\nv_cvt_pk_bf16_f32 v37, v34, v35')
    a('buffer_store_dwordx2 v[36:37], v9, s[44:47], s58 offen')
    stamp(13)
    a('s_cmp_lg_u32 s2, 0')
    a('s_cbranch_scc1 L_fin')
    a('v_mov_b32 v36, s30\nv_mov_b32 v37, s31\nv_mov_b32 v9, 0')
    setexec(1, 0)
    a('buffer_store_dwordx2 v[36:37], v9, s[36:39], 0 offen sc1')
    a('L_fin:')
    if stamps: fullexec()
    if dbgst:
        a('s_lshr_b32 s58, s50, 1\ns_cmp_lt_u32 s51, 18\ns_cselect_b32 s58, s58, 0\ns_cmp_ge_u32 s48, 4\ns_cselect_b32 s58, s58, 0')
        a('s_cmp_lg_u32 s49, s58')
        a('s_cbranch_scc1 L_end')
        a('s_waitcnt lgkmcnt(0)')
        a('v_mov_b32 v2, 0')
        a('s_cmp_lg_u32 s48, 0')
        a('s_cbranch_scc1 L_dk')
        a('s_not_b32 s57, s64')
        a('v_writelane_b32 v2, s57, 1')
        for word, st in ((2, 0), (3, 1), (4, 3), (7, 6)): a('v_writelane_b32 v2, s%d, %d' % (64 + 2 * st, word))
        a('s_branch L_dd')
        a('L_dk:')
        for word, st in ((5, 1), (6, 3), (9, 6), (10, 14), (11, 15), (12, 7), (13, 9), (14, 12), (15, 13)): a('v_writelane_b32 v2, s%d, %d' % (64 + 2 * st, word))
        a('L_dd:')
        a('v_lshlrev_b32 v3, 2, v1')
        setexec(0xfefe, 0)
        a('global_atomic_umax v3, v2, s[26:27]')
    elif stamps:
        a('s_lshr_b32 s58, s50, 1\ns_cmp_lt_u32 s51, 18\ns_cselect_b32 s58, s58, 0\ns_cmp_ge_u32 s48, 4\ns_cselect_b32 s58, s58, 0')
        a('s_cmp_lg_u32 s49, s58')
        a('s_cbranch_scc1 L_end')
        a('s_waitcnt lgkmcnt(0)')
        a('s_and_b32 s48, s48, 4')
        a('s_lshl_b32 s57, s2, 8\ns_lshl_b32 s58, s48, 5\ns_add_u32 s57, s57, s58\ns_add_u32 s57, s57, %d' % TSOFF)
        a('s_add_u32 s28, s28, s57\ns_addc_u32 s29, s29, 0')
        a('v_mov_b32 v1, 0')
        for i in range(16):
            a('v_mov_b32 v2, s%d\nv_mov_b32 v3, s%d' % (64 + 2 * i, 65 + 2 * i))
            a('global_store_dwordx2 v1, v[2:3], s[28:29] offset:%d' % (8 * i))
    a('L_end:')
    a.lines = insert_waits(a.lines)
    return kernel_file([(NAME + '_kernel', a.text(), 256, 102, 256)], [(NAME + '_kernel', 256, 512, LDS_BYTES)])

if __name__ == '__main__':
    B = dict(gate=2, thr_wo=False)
    open('k_main.s', 'w').write(gen(**B))
    open('k_st.s', 'w').write(gen(stamps=True, **B))
    open('k_dbg.s', 'w').write(gen(dbgst=True, **B))
    open('k_st_d.s', 'w').write(gen(stamps=True, cap=8, cap_all=True, **B))
    open('h_a.s', 'w').write(gen(**B))
    open('h_b.s', 'w').write(gen(cap=8, **B))
    open('h_c.s', 'w').write(gen(cap=10, **B))
    open('h_d.s', 'w').write(gen(cap=8, cap_all=True, **B))
    open('h_e.s', 'w').write(gen(gate=1, thr=5, thr_wo=False))
    open('h_f.s', 'w').write(gen(cap=8, down_early=False, **B))
```

```python
import sys
from asmlib import *
from hazard import insert_waits

L_FLAG = 0; L_STW = 64; L_QS = 128; L_RED = 2304; L_P = 6400
RS = 1184
L_HN = L_P; L_H = L_P + 8 * RS; L_RW = L_P
L_W = 25600
L_G = L_W; L_U = L_G + 36864 + 32; L_D = L_W + 73984;
L_WQ = L_W; L_XN = L_W + 18432
LDS_BYTES = 136704
W_Q = 0x200000
W_CLR = 0x80000
W_O = W_CLR; W_ST = W_O + 131072; W_P1 = W_ST + 32768; W_H = W_P1 + 147456; W_A = W_H + 73728; W_U = W_A + 73728; W_P2 = W_U + 73728
CLR_LANES = 202
assert W_P2 + 294912 <= W_CLR + 256 * CLR_LANES * 16
WS_REC = 0x300000
OOB = 0x7ffffff0
LOG2E = 0x3fb8aa3b
SCALE = 0x3db504f3
POLL_MAX = 1 << 14
WARM_SLICES = 16

def v(a, n=1): return 'v%d' % a if n == 1 else 'v[%d:%d]' % (a, a + n - 1)

def gen(slp_h=0, slp_a=0, slp_b1=0, slp_f=0, cap=0, cap_all=False, QPOS=5, gate=True, gate_wo=True, touch=False, down_early=True, thr=5, thr_wo=True, stamps=False, dbgst=False, kvflag='nt', wflag='nt', wqflag='nt', force_global=False):
    a = Asm()
    if dbgst: stamps = True
    def stamp(i):
        if stamps: a('s_memrealtime s[%d:%d]' % (64 + 2 * i, 65 + 2 * i))
    def srd(d, p, size):
        a('s_mov_b32 s%d, s%d\ns_mov_b32 s%d, s%d\ns_mov_b32 s%d, %d\ns_mov_b32 s%d, 0x20000' % (d, p, d + 1, p + 1, d + 2, size, d + 3))
    def setexec(lo, hi):
        a('s_mov_b32 exec_lo, 0x%x\ns_mov_b32 exec_hi, 0x%x' % (lo, hi))
    def fullexec(): a('s_mov_b64 exec, -1')
    def consts():
        a('s_mov_b32 s98, 0x05040100\ns_mov_b32 s99, 0x07060302\ns_mov_b32 s100, 0xffff0000')
        if stamps:
            for i in range(1, 16): a('s_mov_b64 s[%d:%d], 0' % (64 + 2 * i, 65 + 2 * i))
    def bf16r(dst, src, tmp=None):
        a('v_cvt_pk_bf16_f32 %s, %s, %s' % (v(dst), v(src), v(src)))
        a('v_lshlrev_b32 %s, 16, %s' % (v(dst), v(dst)))
    def store_lg(instr):
        lg = a.label('L_sg'); ld = a.label('L_sd')
        a('s_cmp_eq_u32 s96, 0')
        a('s_cbranch_scc1 %s' % lg)
        for i in instr: a(i)
        a('s_branch %s' % ld)
        a('%s:' % lg)
        for i in instr: a(i + ' sc1')
        a('%s:' % ld)
    def lds_spin(off, target, tmp=10):
        lp = a.label('L_spin'); dn = a.label('L_spd')
        a('s_mov_b32 s97, 0')
        a('%s:' % lp)
        a('ds_read_b32 %s, v4 offset:%d' % (v(tmp), off))
        a('s_add_u32 s97, s97, 1')
        a('s_waitcnt lgkmcnt(0)')
        a('v_readfirstlane_b32 s57, %s' % v(tmp))
        a('s_cmp_ge_u32 s97, %d' % (POLL_MAX * 8))
        a('s_cbranch_scc1 %s' % dn)
        a('s_cmp_lt_u32 s57, %d' % target)
        a('s_cbranch_scc1 %s' % lp)
        a('%s:' % dn)
    def throttle(k):
        if not thr or k < thr: return
        lab = a.label('L_thr')
        a('s_cmp_eq_u32 s96, 1')
        a('s_cbranch_scc1 %s' % lab)
        a('ds_read_b32 v12, v4 offset:%d' % (L_FLAG + 4))
        a('s_waitcnt vmcnt(%d) lgkmcnt(0)' % (thr - 1))
        a('v_readfirstlane_b32 s96, v12')
        a('s_cmp_ge_u32 s96, 5')
        a('s_cselect_b32 s96, 1, 0')
        a('%s:' % lab)
    def gate_w():
        if gate == 1: lds_spin(L_FLAG + 20, 4, 12)
        elif gate == 2: lds_spin(L_FLAG + 4, 5, 12)
    def get_mode(tmp):
        lds_spin(L_FLAG + 8, 1, tmp)
        a('s_lshr_b32 s96, s57, 1')
        if force_global: a('s_mov_b32 s96, 0')
    def poll(loads, groups, tmp, mid=None, slp=0):
        lp = a.label('L_poll'); dn = a.label('L_pdone'); ck = a.label('L_pchk')
        a('s_mov_b32 s97, 0')
        if mid:
            for l in loads: a(l)
            mid()
            a('s_branch %s' % ck)
        a('%s:' % lp)
        for l in loads: a(l)
        a('%s:' % ck)
        n = len(loads)
        first = True
        for k, regs in enumerate(groups):
            a('s_waitcnt vmcnt(%d)' % (n - 1 - k))
            regs = list(regs)
            if first:
                if len(regs) == 1: a('v_mov_b32 %s, %s' % (v(tmp), v(regs.pop(0))))
                else: a('v_max_u32 %s, %s, %s' % (v(tmp), v(regs.pop(0)), v(regs.pop(0))))
                first = False
            while len(regs) >= 2:
                a('v_max3_u32 %s, %s, %s, %s' % (v(tmp), v(regs.pop(0)), v(regs.pop(0)), v(tmp)))
            if regs: a('v_max_u32 %s, %s, %s' % (v(tmp), v(regs.pop(0)), v(tmp)))
        a('v_cmp_eq_u32 vcc, -1, %s' % v(tmp))
        a('s_cbranch_vccz %s' % dn)
        if slp: a('s_sleep %d' % slp)
        a('s_add_u32 s97, s97, 1')
        a('s_cmp_lt_u32 s97, %d' % POLL_MAX)
        a('s_cbranch_scc1 %s' % lp)
        a('%s:' % dn)
    def layernorm(D, F, N, T):
        for k in range(9):
            a('v_lshlrev_b32 %s, 16, %s' % (v(F + 2 * k), v(D[k])))
            a('v_and_b32 %s, s100, %s' % (v(F + 2 * k + 1), v(D[k])))
        s0, s1, q0, q1, t0, t1, t2 = range(T, T + 7)
        a('v_pk_add_f32 %s, %s, %s' % (v(s0, 2), v(F, 2), v(F + 2, 2)))
        a('v_pk_mul_f32 %s, %s, %s' % (v(q0, 2), v(F, 2), v(F, 2)))
        a('v_pk_fma_f32 %s, %s, %s, %s' % (v(q0, 2), v(F + 2, 2), v(F + 2, 2), v(q0, 2)))
        for k in range(2, 9):
            a('v_pk_add_f32 %s, %s, %s' % (v(s0, 2), v(s0, 2), v(F + 2 * k, 2)))
            a('v_pk_fma_f32 %s, %s, %s, %s' % (v(q0, 2), v(F + 2 * k, 2), v(F + 2 * k, 2), v(q0, 2)))
        a('v_add_f32 %s, %s, %s' % (v(s0), v(s0), v(s1)))
        a('v_add_f32 %s, %s, %s' % (v(q0), v(q0), v(q1)))
        for r in (8, 4, 2, 1):
            a('v_add_f32_dpp %s, %s, %s row_ror:%d row_mask:0xf bank_mask:0xf' % (v(s0), v(s0), v(s0), r))
            a('v_add_f32_dpp %s, %s, %s row_ror:%d row_mask:0xf bank_mask:0xf' % (v(q0), v(q0), v(q0), r))
        a('v_mov_b32 %s, %s' % (v(s1), v(s0)))
        a('v_mov_b32 %s, %s' % (v(q1), v(q0)))
        a('v_permlane16_swap_b32 %s, %s' % (v(s0), v(s1)))
        a('v_permlane16_swap_b32 %s, %s' % (v(q0), v(q1)))
        a('v_add_f32 %s, %s, %s' % (v(s0), v(s0), v(s1)))
        a('v_add_f32 %s, %s, %s' % (v(q0), v(q0), v(q1)))
        inv = 0x3ae38e39
        a('v_mul_f32 %s, 0x%x, %s' % (v(s0), inv, v(s0)))
        a('v_mul_f32 %s, 0x%x, %s' % (v(q0), inv, v(q0)))
        a('v_fma_f32 %s, -%s, %s, %s' % (v(q0), v(s0), v(s0), v(q0)))
        a('v_max_f32 %s, 0, %s' % (v(q0), v(q0)))
        a('v_cvt_pk_bf16_f32 %s, %s, %s' % (v(t0), v(s0), v(q0)))
        a('v_lshlrev_b32 %s, 16, %s' % (v(s0), v(t0)))
        a('v_and_b32 %s, s100, %s' % (v(q0), v(t0)))
        a('v_add_f32 %s, 0x3727c5ac, %s' % (v(q0), v(q0)))
        sub = lambda k: a('v_pk_add_f32 %s, %s, %s op_sel_hi:[1,0] neg_lo:[0,1] neg_hi:[0,1]' % (v(F + 2 * k, 2), v(F + 2 * k, 2), v(s0, 2)))
        a('v_cvt_pk_bf16_f32 %s, %s, %s' % (v(q0), v(q0), v(q0)))
        sub(0)
        a('v_lshlrev_b32 %s, 16, %s' % (v(q0), v(q0)))
        sub(1)
        a('v_sqrt_f32 %s, %s' % (v(q0), v(q0)))
        sub(2); sub(3)
        a('v_cvt_pk_bf16_f32 %s, %s, %s' % (v(q0), v(q0), v(q0)))
        sub(4)
        a('v_lshlrev_b32 %s, 16, %s' % (v(q0), v(q0)))
        sub(5)
        a('v_rcp_f32 %s, %s' % (v(q0), v(q0)))
        sub(6); sub(7); sub(8)
        for k in range(9): a('v_cvt_pk_bf16_f32 %s, %s, %s' % (v(N[k]), v(F + 2 * k), v(F + 2 * k + 1)))
        for k in range(9):
            a('v_lshlrev_b32 %s, 16, %s' % (v(F + 2 * k), v(N[k])))
            a('v_and_b32 %s, s100, %s' % (v(F + 2 * k + 1), v(N[k])))
        for k in range(9): a('v_pk_mul_f32 %s, %s, %s op_sel_hi:[1,0]' % (v(F + 2 * k, 2), v(F + 2 * k, 2), v(q0, 2)))
        for k in range(9): a('v_cvt_pk_bf16_f32 %s, %s, %s' % (v(N[k]), v(F + 2 * k), v(F + 2 * k + 1)))
    def ln_addrs(dA, dB, t):
        a('v_lshrrev_b32 %s, 5, v1' % v(t))
        a('s_lshl_b32 s57, s49, 1')
        a('v_add_u32 %s, s57, %s' % (v(t), v(t)))
        a('v_mul_u32_u24 %s, %d, %s' % (v(t), RS, v(t)))
        a('v_bfe_u32 %s, v1, 2, 3' % v(dA))
        a('v_lshl_add_u32 %s, %s, 6, %s' % (v(dA), v(dA), v(t)))
        a('v_and_b32 %s, 1, v1' % v(dB))
        a('v_lshl_add_u32 %s, %s, 5, %s' % (v(dA), v(dB), v(dA)))
        a('v_lshl_add_u32 %s, %s, 2, %s' % (v(t), v(dB), v(t)))
        a('v_bfe_u32 %s, v1, 1, 1' % v(dB))
        a('v_lshl_add_u32 %s, %s, 3, %s' % (v(dA), v(dB), v(dA)))
        a('v_bfe_u32 %s, v1, 1, 2' % v(dB))
        a('v_lshl_add_u32 %s, %s, 4, %s' % (v(t), v(dB), v(t)))
        a('v_bfe_u32 %s, v1, 3, 1' % v(dB))
        a('v_lshl_add_u32 %s, %s, 3, %s' % (v(t), v(dB), v(t)))
        a('v_bfe_u32 %s, v1, 4, 1' % v(dB))
        a('v_lshl_add_u32 %s, %s, 6, %s' % (v(dB), v(dB), v(t)))
    def ln_write(base, dA, dB, N):
        o = base // 8
        a('ds_write_b64 %s, %s offset:%d' % (v(dA), v(N[0], 2), base))
        a('ds_write_b64 %s, %s offset:%d' % (v(dA), v(N[2], 2), base + 16))
        a('ds_write_b64 %s, %s offset:%d' % (v(dA), v(N[4], 2), base + 512))
        a('ds_write_b64 %s, %s offset:%d' % (v(dA), v(N[6], 2), base + 528))
        a('ds_write_b32 %s, %s offset:%d' % (v(dB), v(N[8]), base + 1024))
    def row_addrs(dA, dB):
        a('v_lshrrev_b32 %s, 5, v1' % v(dB))
        a('s_lshl_b32 s57, s49, 1')
        a('v_add_u32 %s, s57, %s' % (v(dB), v(dB)))
        a('v_mul_u32_u24 %s, 1152, %s' % (v(dB), v(dB)))
        a('v_and_b32 %s, 31, v1' % v(dA))
        a('v_lshl_add_u32 %s, %s, 2, %s' % (v(dB), v(dA), v(dB)))
        a('v_mul_u32_u24 %s, 12, %s' % (v(dA), v(dA)))
        a('v_add_u32 %s, %s, %s' % (v(dA), v(dA), v(dB)))

    a('L_start:')
    stamp(0)
    a('s_load_dwordx16 s[4:19], s[0:1], 0')
    a('s_load_dwordx8 s[20:27], s[0:1], 64')
    a('s_load_dwordx2 s[28:29], s[0:1], 96')
    a('s_cmp_ge_u32 s2, 256')
    a('s_cbranch_scc1 L_end')
    a('s_getpc_b64 s[62:63]')
    a('L_pc:')
    a('s_lshr_b32 s51, s2, 3')
    a('s_and_b32 s57, s51, %d\ns_lshl_b32 s57, s57, 11' % (WARM_SLICES - 1))
    a('v_lshl_add_u32 v11, v0, 2, s57')
    a('v_min_u32 v11, L_end-L_pc, v11')
    a('global_load_dword v25, v11, s[62:63]')
    a('v_and_b32 v1, 63, v0')
    a('v_lshrrev_b32 v2, 6, v0')
    a('v_mov_b32 v4, 0\nv_mov_b32 v5, 0')
    a('v_readfirstlane_b32 s48, v2')
    a('ds_write2_b64 v4, v[4:5], v[4:5] offset0:0 offset1:1')
    a('ds_write2_b64 v4, v[4:5], v[4:5] offset0:2 offset1:3')
    a('s_and_b32 s50, s2, 7')
    a('s_lshr_b32 s52, s51, 4\ns_lshl_b32 s57, s50, 1\ns_add_u32 s52, s52, s57')
    a('s_and_b32 s53, s51, 15\ns_lshr_b32 s54, s53, 1\ns_and_b32 s55, s53, 1')
    a('s_and_b32 s49, s48, 3')
    a('s_lshl_b32 s56, s54, 4\ns_add_u32 s56, s56, s52\ns_lshl_b32 s56, s56, 20')
    a('s_lshl_b32 s57, s55, 17\ns_add_u32 s56, s56, s57')
    a('s_lshl_b32 s57, s49, 15\ns_add_u32 s56, s56, s57')
    a('s_add_u32 s56, s56, %d' % (3072 * 256))
    a('v_and_b32 v2, 15, v1')
    a('v_lshrrev_b32 v3, 4, v1')
    a('v_lshlrev_b32 v6, 8, v2\nv_lshl_add_u32 v6, v3, 4, v6')
    row_addrs(8, 9)
    a('s_mov_b32 s34, %d\ns_mov_b32 s35, 0x20000' % (1 << 27))
    a('s_mov_b32 s42, 9216\ns_mov_b32 s43, 0x20000')
    a('s_sub_u32 s3, s51, 18\ns_cmp_ge_u32 s3, 9\ns_cselect_b32 s3, 1, 0')
    a('s_cmp_ge_u32 s48, 4')
    a('s_waitcnt lgkmcnt(0)')
    a('s_barrier')
    a('s_cbranch_scc0 L_vwave')
    a('s_setprio 2')
    a('s_mov_b32 s32, s6\ns_mov_b32 s33, s7')
    def capw(n):
        step = 2 if cap % 2 == 0 else 1
        if cap and n >= cap and n % step == 0:
            if cap_all:
                a('s_waitcnt vmcnt(%d)' % (cap - step))
            else:
                lab = a.label('L_cap')
                a('s_cbranch_scc0 %s' % lab)
                a('s_waitcnt vmcnt(%d)' % (cap - step))
                a('%s:' % lab)
    def capscc():
        if cap and not cap_all: a('s_cmp_lg_u32 s3, 0')
    def kl(t):
        a('s_add_u32 s57, s56, %d' % (t * 4096))
        capscc()
        for s in range(4):
            capw(t * 4 + s)
            a('buffer_load_dwordx4 %s, v6, s[32:35], s57 offen offset:%d %s' % (v(128 + (t * 4 + s) * 4, 4), s * 64, kvflag))
    kl(0)
    a('s_load_dwordx2 s[30:31], s[28:29], 0')
    srd(36, 28, WS_REC)
    a('v_and_b32 v7, 31, v1\nv_lshlrev_b32 v17, 2, v7\nv_lshlrev_b32 v7, 4, v7\nv_lshrrev_b32 v8, 5, v1\nv_lshl_add_u32 v7, v8, 11, v7\nv_add_u32 v13, 4096, v7')
    a('s_lshl_b32 s57, s52, 3\ns_add_u32 s57, s57, s54\ns_lshl_b32 s57, s57, 13\ns_lshl_b32 s58, s49, 9\ns_add_u32 s57, s57, s58\ns_add_u32 s59, s57, %d' % W_Q)
    a('s_lshl_b32 s57, s49, 7\nv_add_u32 v17, s57, v17')
    for t in range(1, 8):
        kl(t)
        if t == QPOS:
            a('buffer_load_dwordx4 v[112:115], v7, s[36:39], s59 offen sc1')
            a('buffer_load_dwordx4 v[116:119], v13, s[36:39], s59 offen sc1')
    a('s_branch L_kwave')

    a('L_vwave:')
    a('s_setprio 3')
    a('s_mov_b32 s40, s4\ns_mov_b32 s41, s5')
    a('buffer_load_dwordx4 v[16:19], v8, s[40:43], 0 offen')
    a('buffer_load_dwordx4 v[20:23], v8, s[40:43], 0 offen offset:512')
    a('buffer_load_dword v24, v9, s[40:43], 0 offen offset:1024')
    srd(44, 10, 576 * 4096 * 2)
    a('v_lshrrev_b32 v10, 3, v1\nv_lshlrev_b32 v10, 13, v10\nv_bfe_u32 v11, v1, 4, 2\nv_lshlrev_b32 v11, 1, v11\nv_and_b32 v12, 7, v1\nv_xor_b32 v11, v11, v12')
    a('v_lshl_add_u32 v10, v11, 4, v10')
    a('s_lshr_b32 s61, s53, 2\ns_and_b32 s62, s53, 3')
    a('s_mul_i32 s58, s61, %d\ns_lshl_b32 s57, s49, 16\ns_add_u32 s58, s58, s57' % (144 * 8192))
    a('s_lshl_b32 s57, s52, 9\ns_add_u32 s58, s58, s57\ns_lshl_b32 s57, s62, 7\ns_add_u32 s58, s58, s57')
    a('s_lshl_b32 s59, s49, 10\ns_add_u32 s59, s59, %d' % L_WQ)
    for k in range(5):
        if k == 4:
            a('s_cmp_ge_u32 s49, 2')
            a('s_cbranch_scc1 L_wq4')
        a('s_mov_b32 m0, s59')
        a('s_add_u32 s59, s59, 4096')
        a('buffer_load_dwordx4 v10, s[44:47], s58 offen %s lds' % wqflag)
        a('s_add_u32 s58, s58, %d' % (32 * 8192))
    a('L_wq4:')
    a('s_load_dwordx2 s[30:31], s[28:29], 0')
    srd(36, 28, WS_REC)
    a('v_lshlrev_b32 v11, 4, v0\nv_mov_b32 v10, 0x%x\nv_cmp_gt_u32 vcc, %d, v0\nv_cndmask_b32 v11, v10, v11, vcc' % (OOB, CLR_LANES))
    a('v_mov_b32 v12, -1\nv_mov_b32 v13, -1\nv_mov_b32 v14, -1\nv_mov_b32 v15, -1')
    a('s_mul_i32 s60, s2, %d\ns_add_u32 s60, s60, %d' % (CLR_LANES * 16, W_CLR))
    a('buffer_store_dwordx4 v[12:15], v11, s[36:39], s60 offen sc1')
    a('s_mov_b32 s32, s8\ns_mov_b32 s33, s9')
    consts()
    a('v_lshrrev_b32 v10, 5, v1\ns_lshl_b32 s57, s49, 1\nv_add_u32 v10, s57, v10\nv_lshlrev_b32 v10, 5, v10')
    a('v_add_u32 v8, v8, v10\nv_add_u32 v9, v9, v10')
    a('v_bfe_u32 v6, v1, 2, 2\nv_lshl_add_u32 v6, v3, 2, v6')
    a('v_bfe_u32 v7, v6, 1, 2\nv_xor_b32 v7, s49, v7\nv_lshlrev_b32 v7, 5, v7\nv_lshl_add_u32 v6, v6, 7, v7')
    a('v_and_b32 v7, 3, v1\nv_lshl_add_u32 v6, v7, 3, v6')
    a('v_and_b32 v7, 7, v1\nv_mul_u32_u24 v7, %d, v7\nv_lshl_add_u32 v7, v3, 3, v7\ns_mul_i32 s57, s61, 288\nv_add_u32 v7, s57, v7' % RS)
    a('s_waitcnt vmcnt(5)')
    stamp(1)
    layernorm([16, 17, 18, 19, 20, 21, 22, 23, 24], 34, [52, 53, 54, 55, 56, 57, 58, 59, 60], 26)
    a('ds_write_b128 v8, v[52:55] offset:%d' % L_XN)
    a('ds_write_b128 v8, v[56:59] offset:%d' % (L_XN + 512))
    a('ds_write_b32 v9, v60 offset:%d' % (L_XN + 1024))
    a('v_mov_b32 v4, 0\nv_mov_b32 v5, 1')
    a('s_waitcnt vmcnt(0) lgkmcnt(0)')
    stamp(2)
    setexec(1, 0)
    a('ds_add_u32 v4, v5 offset:%d' % (L_FLAG + 0))
    fullexec()
    a('s_add_u32 s30, s30, 1')
    a('s_getreg_b32 s57, hwreg(HW_REG_XCC_ID, 0, 4)')
    a('s_mul_i32 s58, s57, s57\ns_lshl_b32 s58, s58, 16\ns_lshl_b32 s57, s57, 8\ns_add_u32 s57, s57, s58\ns_add_u32 s57, s57, 1')
    a('v_mov_b32 v8, s57')
    a('s_lshl_b32 s58, s50, 5')
    a('v_mov_b32 v9, s58')
    QA = 64; QB = 64 + 20
    a('v_mov_b32 %s, 0\nv_mov_b32 %s, 0\nv_mov_b32 %s, 0\nv_mov_b32 %s, 0' % (v(QA + 18), v(QA + 19), v(QB + 18), v(QB + 19)))
    a('v_and_b32 v11, 7, v1\nv_lshlrev_b32 v11, 13, v11\nv_lshl_add_u32 v11, v3, 5, v11\nv_and_b32 v10, 8, v1\nv_lshl_add_u32 v11, v10, 1, v11')
    a('s_lshl_b32 s57, s52, 16\ns_lshl_b32 s58, s61, 11\ns_add_u32 s57, s57, s58\ns_lshl_b32 s58, s62, 9\ns_add_u32 s57, s57, s58')
    a('s_lshl_b32 s58, s49, 7\ns_add_u32 s57, s57, s58\ns_add_u32 s59, s57, %d' % W_Q)
    a('v_mov_b32 v33, s30\nv_mov_b32 v35, s30')
    a('v_cmp_gt_u32 s[60:61], 8, v2')
    lds_spin(L_FLAG + 0, 4)
    for s in range(5):
        a('ds_read_b64_tr_b16 %s, v6 offset:%d' % (v(QA + 4 * s, 2), L_WQ + s * 4096))
        a('ds_read_b64 %s, v7 offset:%d' % (v(QB + 4 * s, 2), L_XN + s * 64))
        if s < 4:
            a('ds_read_b64_tr_b16 %s, v6 offset:%d' % (v(QA + 4 * s + 2, 2), L_WQ + s * 4096 + 2048))
            a('ds_read_b64 %s, v7 offset:%d' % (v(QB + 4 * s + 2, 2), L_XN + s * 64 + 32))
        if s == 2: a('s_waitcnt lgkmcnt(8)')
    a('s_cmp_lg_u32 s48, 0')
    a('s_cbranch_scc1 L_noatom')
    setexec(1, 0)
    a('global_atomic_add v9, v8, s[26:27]')
    fullexec()
    a('L_noatom:')
    for t in range(5):
        a('s_waitcnt lgkmcnt(%d)' % max(0, 14 - 4 * t))
        a('v_mfma_f32_16x16x32_bf16 v[28:31], %s, %s, %s' % (v(QA + 4 * t, 4), v(QB + 4 * t, 4), '0' if t == 0 else 'v[28:31]'))
    a('v_cndmask_b32 v32, v30, v28, s[60:61]\nv_cndmask_b32 v34, v31, v29, s[60:61]')
    a('buffer_store_dwordx4 v[32:35], v11, s[36:39], s59 offen sc1')
    stamp(3)
    if cap: lds_spin(L_FLAG + 24, 4)
    a('s_setprio 1')
    a('v_lshlrev_b32 v6, 10, v3\nv_lshl_add_u32 v6, v2, 4, v6')
    for blk in range(4):
        for j in range(8):
            if j % 4 == 0:
                a('s_add_u32 s57, s56, %d' % (blk * 8192 + (j >> 2) * 4096))
                capscc()
            capw(blk * 8 + j)
            a('buffer_load_dwordx4 %s, v6, s[32:35], s57 offen offset:%d %s' % (v(128 + (blk * 8 + j) * 4, 4), (j & 3) * 256, kvflag))
    a('s_setprio 3')
    setexec(1, 0)
    a('ds_add_u32 v4, v5 offset:%d' % (L_FLAG + 20))
    fullexec()
    stamp(4)
    a('s_lshl_b32 s57, s49, 12\ns_add_u32 s57, s57, %d' % L_P)
    a('v_and_b32 v7, 1, v1\nv_lshlrev_b32 v8, 8, v3\nv_add_u32 v8, s57, v8')
    a('v_lshl_add_u32 v9, v7, 4, v8')
    a('v_add_u32 v8, 32, v8')
    a('v_lshrrev_b32 v27, 1, v2')
    for i in range(8):
        a('v_cmp_eq_u32 vcc, %d, v27' % i)
        a('v_cndmask_b32 %s, v8, v9, vcc' % v(16 + i))
    a('v_lshlrev_b32 v11, 3, v7')
    lds_spin(L_FLAG + 16, 4)
    stamp(5)
    for w in range(4): a('ds_read_b64 %s, v11 offset:%d' % (v(32 + 2 * w, 2), L_STW + w * 16))
    a('s_lshl_b32 s57, s49, 4')
    a('v_add_u32 v13, s57, v11')
    a('ds_read_b32 v40, v13 offset:%d' % L_STW)
    PB = [96, 64 - 32]
    for i in range(8): a('ds_read_b128 %s, %s' % (v(PB[0] + 4 * i, 4), v(16 + i)))
    a('s_waitcnt lgkmcnt(8)')
    a('v_max3_f32 v41, v32, v34, v36\nv_max_f32 v41, v41, v38')
    a('s_mov_b32 s57, 0x%x' % LOG2E)
    for w in range(4):
        a('v_sub_f32 %s, %s, v41' % (v(32 + 2 * w), v(32 + 2 * w)))
        a('v_mul_f32 %s, s57, %s' % (v(32 + 2 * w), v(32 + 2 * w)))
        a('v_exp_f32 %s, %s' % (v(32 + 2 * w), v(32 + 2 * w)))
    a('v_sub_f32 v40, v40, v41\nv_mul_f32 v40, s57, v40\nv_exp_f32 v40, v40')
    a('v_mul_f32 v42, v32, v33\nv_fmac_f32 v42, v34, v35\nv_fmac_f32 v42, v36, v37\nv_fmac_f32 v42, v38, v39')
    a('v_rcp_f32 v43, v42')
    a('v_mul_f32 v26, v40, v43')
    a('v_min_u32 v41, -2, v41\nv_min_u32 v42, -2, v42')
    a('v_mov_b32_dpp v8, v41 quad_perm:[0,0,2,2] row_mask:0xf bank_mask:0xf')
    a('v_mov_b32_dpp v9, v42 quad_perm:[0,0,2,2] row_mask:0xf bank_mask:0xf')
    a('v_mov_b32_dpp v10, v41 quad_perm:[1,1,3,3] row_mask:0xf bank_mask:0xf')
    a('v_mov_b32_dpp v11, v42 quad_perm:[1,1,3,3] row_mask:0xf bank_mask:0xf')
    a('v_lshlrev_b32 v12, 12, v7')
    a('v_lshl_add_u32 v12, v3, 6, v12')
    a('v_lshl_add_u32 v12, v27, 3, v12')
    a('s_lshl_b32 s58, s50, 14\ns_and_b32 s57, s52, 1\ns_lshl_b32 s57, s57, 13\ns_add_u32 s58, s58, s57')
    a('s_lshl_b32 s57, s55, 3\ns_add_u32 s57, s57, s54')
    a('s_lshl_b32 s59, s57, 8\ns_add_u32 s58, s58, s59\ns_add_u32 s58, s58, %d' % W_O)
    a('s_lshl_b32 s59, s57, 7\ns_lshl_b32 s57, s52, 11\ns_add_u32 s59, s59, s57\ns_add_u32 s59, s59, %d' % W_ST)
    a('v_lshlrev_b32 v13, 4, v1\nv_mov_b32 v14, 0x%x\nv_cmp_gt_u32 vcc, 8, v1\nv_cndmask_b32 v13, v14, v13, vcc' % OOB)
    a('v_lshlrev_b32 v14, 4, v1')
    a('s_lshl_b32 s57, s49, 10')
    a('v_add_u32 v15, s57, v14')
    AS = 64
    for blk in range(4):
        cur = PB[blk & 1]; nxt = PB[(blk + 1) & 1]
        VD = 128 + blk * 32
        for jp in range(4):
            a('s_waitcnt vmcnt(%d)' % (32 - blk * 8 - 2 * jp - 2))
            for i in range(8):
                a('v_perm_b32 %s, %s, %s, %s' % (v(AS + 4 * i + jp), v(VD + (2 * jp + 1) * 4 + (i >> 1)), v(VD + 2 * jp * 4 + (i >> 1)), 's99' if i & 1 else 's98'))
        a('s_waitcnt lgkmcnt(0)')
        if blk < 3:
            for i in range(8): a('ds_read_b128 %s, %s offset:%d' % (v(nxt + 4 * i, 4), v(16 + i), (blk + 1) * 1024))
        for i in range(8):
            a('v_mfma_f32_16x16x32_bf16 v[28:31], %s, %s, %s' % (v(AS + 4 * i, 4), v(cur + 4 * i, 4), '0' if (blk == 0 and i == 0) else 'v[28:31]'))
    stamp(6)
    for r in range(4): a('v_mul_f32 %s, v26, %s' % (v(28 + r), v(28 + r)))
    a('ds_write_b128 v15, v[28:31] offset:%d' % L_RED)
    a('v_mov_b32 v5, 1')
    a('s_waitcnt lgkmcnt(0)')
    setexec(1, 0)
    a('ds_add_rtn_u32 v6, v4, v5 offset:%d' % (L_FLAG + 4))
    fullexec()
    a('s_waitcnt lgkmcnt(0)')
    a('v_readfirstlane_b32 s57, v6')
    a('s_cmp_lg_u32 s57, 3')
    a('s_cbranch_scc1 L_fin')
    for w in range(4): a('ds_read_b128 %s, v14 offset:%d' % (v(32 + 4 * w, 4), L_RED + w * 1024))
    a('s_waitcnt lgkmcnt(2)')
    for r in range(4): a('v_add_f32 %s, %s, %s' % (v(32 + r), v(32 + r), v(36 + r)))
    a('s_waitcnt lgkmcnt(0)')
    for r in range(4): a('v_add_f32 %s, %s, %s' % (v(40 + r), v(40 + r), v(44 + r)))
    for r in range(4): a('v_add_f32 %s, %s, %s' % (v(32 + r), v(32 + r), v(40 + r)))
    a('v_cvt_pk_bf16_f32 v36, v32, v33\nv_cvt_pk_bf16_f32 v37, v34, v35')
    a('v_min_u32 v36, -2, v36\nv_min_u32 v37, -2, v37')
    get_mode(6)
    store_lg(['buffer_store_dwordx2 v[36:37], v12, s[36:39], s58 offen', 'buffer_store_dwordx4 v[8:11], v13, s[36:39], s59 offen'])
    setexec(1, 0)
    a('ds_add_u32 v4, v5 offset:%d' % (L_FLAG + 4))
    stamp(7)
    a('s_branch L_fin')

    a('L_kwave:')
    consts()
    a('s_setprio 3')
    stamp(1)
    srd(40, 26, 256)
    a('v_lshlrev_b32 v10, 5, v1')
    a('buffer_load_dword v16, v10, s[40:43], 0 offen sc1')
    a('v_mov_b32 v4, 0\nv_mov_b32 v5, 1')
    if cap:
        setexec(1, 0)
        a('ds_add_u32 v4, v5 offset:%d' % (L_FLAG + 24))
        fullexec()
    a('v_and_b32 v18, 1, v1\nv_lshlrev_b32 v18, 8, v18\nv_lshl_add_u32 v18, v3, 4, v18')
    a('s_mov_b32 s58, 0x%x' % SCALE)
    a('s_waitcnt lgkmcnt(0)')
    a('s_add_u32 s30, s30, 1')
    a('s_mov_b32 s97, 0')
    a('s_waitcnt vmcnt(%d)' % (4 * (7 - QPOS) + 1))
    a('s_branch L_qchk')
    a('L_qpoll:')
    a('buffer_load_dwordx4 v[112:115], v7, s[36:39], s59 offen sc1')
    a('buffer_load_dwordx4 v[116:119], v13, s[36:39], s59 offen sc1')
    a('s_add_u32 s97, s97, 1')
    a('s_waitcnt vmcnt(0)')
    a('L_qchk:')
    a('v_xor_b32 v8, s30, v113\nv_xor_b32 v9, s30, v115\nv_xor_b32 v10, s30, v117\nv_xor_b32 v11, s30, v119')
    a('v_or3_b32 v8, v8, v9, v10\nv_or_b32 v8, v8, v11')
    a('v_cmp_ne_u32 vcc, 0, v8')
    a('s_cbranch_vccz L_qok')
    a('s_cmp_lt_u32 s97, %d' % POLL_MAX)
    a('s_cbranch_scc1 L_qpoll')
    a('L_qok:')
    if stamps: a('s_mov_b32 s74, s97\ns_mov_b32 s75, 0')
    a('v_add_f32 v8, v112, v116\nv_add_f32 v9, v114, v118')
    a('v_mov_b32 v10, v8\nv_mov_b32 v11, v9')
    a('v_permlane32_swap_b32 v8, v10\nv_permlane32_swap_b32 v9, v11')
    a('v_add_f32 v8, v8, v10\nv_add_f32 v9, v9, v11')
    a('v_cvt_pk_bf16_f32 v8, v8, v9')
    a('ds_write_b32 v17, v8 offset:%d' % L_QS)
    a('s_waitcnt lgkmcnt(0)')
    setexec(1, 0)
    a('ds_add_u32 v4, v5 offset:%d' % (L_FLAG + 12))
    fullexec()
    lds_spin(L_FLAG + 12, 4, 12)
    stamp(2)
    for s in range(4): a('ds_read_b128 %s, v18 offset:%d' % (v(96 + 4 * s, 4), L_QS + s * 64))
    a('s_waitcnt lgkmcnt(0)')
    S = 64
    def post(t):
        x = S + 4 * t
        a('v_cvt_pk_bf16_f32 v12, %s, %s\nv_cvt_pk_bf16_f32 v13, %s, %s' % (v(x), v(x + 1), v(x + 2), v(x + 3)))
        a('v_lshlrev_b32 %s, 16, v12\nv_and_b32 %s, s100, v12\nv_lshlrev_b32 %s, 16, v13\nv_and_b32 %s, s100, v13' % (v(x), v(x + 1), v(x + 2), v(x + 3)))
        for r in range(4): a('v_mul_f32 %s, s58, %s' % (v(x + r), v(x + r)))
        a('v_cvt_pk_bf16_f32 v12, %s, %s\nv_cvt_pk_bf16_f32 v13, %s, %s' % (v(x), v(x + 1), v(x + 2), v(x + 3)))
        a('v_lshlrev_b32 %s, 16, v12\nv_and_b32 %s, s100, v12\nv_lshlrev_b32 %s, 16, v13\nv_and_b32 %s, s100, v13' % (v(x), v(x + 1), v(x + 2), v(x + 3)))
        if t == 0:
            a('v_max_f32 v8, %s, %s\nv_max_f32 v9, %s, %s' % (v(x), v(x + 1), v(x + 2), v(x + 3)))
        else:
            a('v_max3_f32 v8, %s, %s, v8\nv_max3_f32 v9, %s, %s, v9' % (v(x), v(x + 1), v(x + 2), v(x + 3)))
    for t in range(8):
        if t > QPOS: a('s_waitcnt vmcnt(%d)' % (29 - 4 * t if t < 7 else 0))
        elif t == 7: a('s_waitcnt vmcnt(0)')
        for s in range(4):
            a('v_mfma_f32_16x16x32_bf16 %s, %s, %s, %s' % (v(S + 4 * t, 4), v(128 + (t * 4 + s) * 4, 4), v(96 + 4 * s, 4), '0' if s == 0 else v(S + 4 * t, 4)))
        if t >= 1: post(t - 1)
    post(7)
    a('v_max_f32 v8, v8, v9')
    a('v_mov_b32 v9, v8\nv_permlane16_swap_b32 v8, v9\nv_max_f32 v8, v8, v9')
    a('v_mov_b32 v9, v8\nv_permlane32_swap_b32 v8, v9\nv_max_f32 v8, v8, v9')
    a('s_mov_b32 s57, 0x%x' % LOG2E)
    for k in range(32): a('v_sub_f32 %s, %s, v8' % (v(S + k), v(S + k)))
    for k in range(32): a('v_mul_f32 %s, s57, %s' % (v(S + k), v(S + k)))
    for k in range(32): a('v_exp_f32 %s, %s' % (v(S + k), v(S + k)))
    for p in range(16): a('v_cvt_pk_bf16_f32 %s, %s, %s' % (v(96 + p), v(S + 2 * p), v(S + 2 * p + 1)))
    a('s_lshl_b32 s57, s49, 12')
    a('v_lshl_add_u32 v10, v1, 4, s57')
    a('v_mov_b32 v12, 0\nv_mov_b32 v13, 0\nv_mov_b32 v14, 0\nv_mov_b32 v15, 0')
    setexec(0x00030003, 0x00030003)
    for blk in range(4): a('ds_write_b128 v10, %s offset:%d' % (v(96 + 4 * blk, 4), L_P + blk * 1024))
    setexec(0x00040004, 0x00040004)
    for blk in range(4): a('ds_write_b128 v10, v[12:15] offset:%d' % (L_P + blk * 1024))
    fullexec()
    for st in (16, 8, 4, 2):
        for k in range(0, st, 2): a('v_pk_add_f32 %s, %s, %s' % (v(S + k, 2), v(S + k, 2), v(S + st + k, 2)))
    a('v_add_f32 v9, %s, %s' % (v(S), v(S + 1)))
    a('v_mov_b32 v10, v9\nv_permlane16_swap_b32 v9, v10\nv_add_f32 v9, v9, v10')
    a('v_mov_b32 v10, v9\nv_permlane32_swap_b32 v9, v10\nv_add_f32 v9, v9, v10')
    a('s_lshl_b32 s57, s49, 4')
    a('v_lshl_add_u32 v11, v1, 3, s57')
    setexec(3, 0)
    a('ds_write_b64 v11, v[8:9] offset:%d' % L_STW)
    a('s_waitcnt lgkmcnt(0)')
    setexec(1, 0)
    a('ds_add_u32 v4, v5 offset:%d' % (L_FLAG + 16))
    fullexec()
    stamp(3)
    a('s_cmp_lg_u32 s49, 0')
    a('s_cbranch_scc1 L_kb1')
    a('v_lshlrev_b32 v10, 5, v1')
    a('s_getreg_b32 s57, hwreg(HW_REG_XCC_ID, 0, 4)')
    a('s_mul_i32 s58, s57, s57\ns_lshl_b32 s58, s58, 16\ns_lshl_b32 s57, s57, 8\ns_add_u32 s57, s57, s58\ns_add_u32 s57, s57, 1\ns_lshl_b32 s58, s57, 5')
    a('s_mov_b32 s97, 0')
    a('s_branch L_cchk')
    a('L_cpoll:')
    a('buffer_load_dword v16, v10, s[40:43], 0 offen sc1')
    a('L_cchk:')
    a('s_add_u32 s97, s97, 1')
    a('s_waitcnt vmcnt(0)')
    a('v_and_b32 v12, 63, v16')
    a('v_cmp_ne_u32 vcc, 32, v12')
    a('s_and_b32 s57, vcc_lo, 0xff')
    a('s_cbranch_scc0 L_cok')
    a('s_cmp_lt_u32 s97, %d' % POLL_MAX)
    a('s_cbranch_scc1 L_cpoll')
    a('L_cok:')
    a('v_readlane_b32 s57, v16, s50')
    a('s_cmp_eq_u32 s57, s58')
    a('s_cselect_b32 s57, 2, 1')
    a('v_mov_b32 v11, s57')
    if touch and not force_global:
        a('s_cbranch_scc0 L_notouch')
        a('v_mov_b32 v12, -1\nv_mov_b32 v13, -1\nv_mov_b32 v14, -1\nv_mov_b32 v15, -1')
        a('s_lshl_b32 s58, s50, 14\ns_and_b32 s57, s52, 1\ns_lshl_b32 s57, s57, 13\ns_add_u32 s58, s58, s57')
        a('s_lshl_b32 s57, s55, 3\ns_add_u32 s57, s57, s54')
        a('s_lshl_b32 s59, s57, 8\ns_add_u32 s58, s58, s59\ns_add_u32 s58, s58, %d' % W_O)
        a('s_lshl_b32 s59, s57, 7\ns_lshl_b32 s57, s52, 11\ns_add_u32 s59, s59, s57\ns_add_u32 s59, s59, %d' % W_ST)
        a('v_lshlrev_b32 v6, 12, v3\nv_lshl_add_u32 v6, v2, 4, v6\nv_lshlrev_b32 v7, 4, v1')
        setexec(0xffffffff, 0)
        a('buffer_store_dwordx4 v[12:15], v6, s[36:39], s58 offen')
        setexec(0xff, 0)
        a('buffer_store_dwordx4 v[12:15], v7, s[36:39], s59 offen')
        a('s_mul_i32 s58, s50, 9216')
        a('s_cmp_lt_u32 s51, 18')
        a('s_cbranch_scc0 L_touch_wo')
        setexec(0xffffffff, 0)
        a('s_lshl_b32 s57, s51, 9\ns_add_u32 s58, s58, s57\ns_add_u32 s58, s58, %d' % W_A)
        a('buffer_store_dwordx4 v[12:15], v7, s[36:39], s58 offen')
        a('s_branch L_touch_done')
        a('L_touch_wo:')
        a('s_cmp_ge_u32 s51, 27')
        a('s_cbranch_scc1 L_touch_done')
        fullexec()
        a('v_lshrrev_b32 v6, 3, v1\nv_mul_u32_u24 v6, 1152, v6\nv_and_b32 v7, 7, v1\nv_lshl_add_u32 v6, v7, 4, v6')
        a('s_sub_u32 s57, s51, 18\ns_lshl_b32 s57, s57, 7\ns_add_u32 s58, s58, s57\ns_add_u32 s58, s58, %d' % W_H)
        a('buffer_store_dwordx4 v[12:15], v6, s[36:39], s58 offen')
        a('L_touch_done:')
        fullexec()
        a('s_waitcnt vmcnt(0)')
        a('L_notouch:')
    a('ds_write_b32 v4, v11 offset:%d' % (L_FLAG + 8))
    a('L_kb1:')
    stamp(4)
    a('s_setprio 0')
    a('s_cmp_lt_u32 s51, 18')
    a('s_cbranch_scc1 L_ffn')
    a('s_cmp_ge_u32 s51, 27')
    a('s_cbranch_scc1 L_spare')

    DF = 176; AF = 64
    def down_setup(kh, LD):
        a('v_lshrrev_b32 v40, 3, v1\nv_mul_u32_u24 v40, 1152, v40\nv_bfe_u32 v41, v1, 4, 1\nv_lshlrev_b32 v41, 1, v41\nv_and_b32 v42, 7, v1\nv_xor_b32 v41, v41, v42')
        a('s_and_b32 s57, s49, 1\ns_lshl_b32 s57, s57, 2\nv_xor_b32 v41, s57, v41\nv_xor_b32 v42, 4, v41')
        a('v_lshl_add_u32 v41, v41, 4, v40\nv_lshl_add_u32 v40, v42, 4, v40')
        a('v_bfe_u32 v43, v1, 2, 2\nv_lshl_add_u32 v43, v3, 3, v43\nv_lshlrev_b32 v42, 7, v43')
        a('v_bfe_u32 v43, v1, 3, 2\nv_xor_b32 v43, s49, v43\nv_lshl_add_u32 v42, v43, 5, v42')
        a('v_and_b32 v43, 3, v1\nv_lshl_add_u32 v42, v43, 3, v42\nv_add_u32 v42, %d, v42' % LD)
        a('v_and_b32 v44, 7, v1\nv_lshlrev_b32 v43, 4, v44\nv_lshl_add_u32 v43, v3, 7, v43')
        a('v_lshlrev_b32 v44, 12, v44\nv_lshl_add_u32 v44, v3, 4, v44\nv_mov_b32 v45, 0x%x\nv_cmp_gt_u32 vcc, 8, v2\nv_cndmask_b32 v44, v45, v44, vcc' % OOB)
        a('s_mul_i32 s6, s50, 576\ns_mul_i32 s57, s49, 72\ns_add_u32 s6, s6, s57\ns_add_u32 s6, s6, %d\ns_mul_i32 s6, s6, 1152' % (kh * 288))
        a('s_lshl_b32 s57, s101, 7\ns_add_u32 s6, s6, s57')
        a('s_mul_i32 s7, s49, 9216\ns_add_u32 s7, s7, %d' % LD)
        a('s_mul_i32 s8, s50, 9216\ns_add_u32 s8, s8, %d\ns_add_u32 s9, s8, 4096' % (W_A + kh * 4608))
        a('s_lshl_b32 s10, s101, 15\ns_lshl_b32 s57, s50, 9\ns_add_u32 s10, s10, s57\ns_lshl_b32 s57, s49, 6\ns_add_u32 s10, s10, s57\ns_add_u32 s10, s10, %d' % (W_P2 + kh * 256))
    def down_loads(NB, thr_on):
        srd(40, 22, 4608 * 1152)
        for k in range(9):
            for nb in range(NB):
                if thr_on: throttle(k * NB + nb)
                if nb == 0: a('s_mov_b32 m0, s7')
                else: a('s_add_u32 s57, s7, %d\ns_mov_b32 m0, s57' % (36864 - 128))
                a('buffer_load_dwordx4 %s, s[40:43], s6 offen offset:%d %s lds' % ('v40' if k & 1 else 'v41', nb * 128, wflag))
            a('s_add_u32 s7, s7, 1024')
            a('s_add_u32 s6, s6, %d' % (8 * 1152))
    def down_compute(NB):
        for nb in range(NB):
            if nb: a('v_add_u32 v42, 36864, v42')
            for s in range(9):
                a('ds_read_b64_tr_b16 %s, v42 offset:%d' % (v(DF + 36 * nb + 4 * s, 2), s * 4096))
                a('ds_read_b64_tr_b16 %s, v42 offset:%d' % (v(DF + 36 * nb + 4 * s + 2, 2), s * 4096 + 512))
        poll(['buffer_load_dwordx4 %s, v43, s[36:39], %s offen offset:%d sc1' % (v(AF + 4 * s, 4), 's8' if s < 8 else 's9', (s & 7) * 512) for s in range(9)],
             [range(AF + 4 * s, AF + 4 * s + 4) for s in range(9)], 19, slp=slp_a)
        stamp(12)
        a('s_waitcnt lgkmcnt(0)')
        for s in range(9):
            for nb in range(NB):
                a('v_mfma_f32_16x16x32_bf16 %s, %s, %s, %s' % (v(32 + 4 * nb, 4), v(DF + 36 * nb + 4 * s, 4), v(AF + 4 * s, 4), '0' if s == 0 else v(32 + 4 * nb, 4)))
        for nb in range(NB):
            for r in range(4): a('v_min_u32 %s, -2, %s' % (v(32 + 4 * nb + r), v(32 + 4 * nb + r)))
            if nb: a('s_add_u32 s10, s10, 32768')
            a('buffer_store_dwordx4 %s, v44, s[36:39], s10 offen sc1' % v(32 + 4 * nb, 4))
        stamp(13)

    a('s_sub_u32 s61, s51, 18')
    srd(40, 12, 4096 * 1152)
    srd(44, 4, 9216)
    a('v_lshrrev_b32 v6, 3, v1\nv_mul_u32_u24 v6, 1152, v6')
    a('v_bfe_u32 v7, v1, 4, 1\nv_lshlrev_b32 v7, 1, v7\nv_and_b32 v8, 7, v1\nv_xor_b32 v7, v7, v8')
    a('v_lshl_add_u32 v6, v7, 4, v6')
    a('v_bfe_u32 v7, v1, 4, 1\ns_lshl_b32 s57, s49, 1\nv_add_u32 v7, s57, v7\nv_mul_u32_u24 v7, 1152, v7')
    a('v_lshl_add_u32 v7, v2, 3, v7')
    a('s_lshl_b32 s57, s61, 7')
    a('buffer_load_dwordx2 v[20:21], v7, s[44:47], s57 offen')
    a('v_mov_b32 v8, 0x%x\nv_cmp_gt_u32 vcc, 32, v1\nv_cndmask_b32 v22, v8, v7, vcc' % OOB)
    a('s_mul_i32 s62, s50, 9216\ns_add_u32 s62, s62, s57\ns_add_u32 s62, s62, %d' % W_H)
    a('s_mul_i32 s60, s49, %d\ns_add_u32 s60, s60, %d' % (16 * 1088, L_W))
    a('v_bfe_u32 v8, v1, 2, 2\nv_mul_u32_u24 v8, 1088, v8\nv_lshl_add_u32 v8, v3, 8, v8')
    a('v_and_b32 v9, 3, v1\nv_lshl_add_u32 v8, v9, 3, v8\nv_add_u32 v8, s60, v8')
    a('v_and_b32 v9, 1, v3\nv_lshl_add_u32 v10, v9, 5, v8')
    a('v_xor_b32 v9, 1, v9\nv_lshl_add_u32 v11, v9, 5, v8')
    a('v_lshlrev_b32 v13, 8, v2\nv_lshl_add_u32 v13, v3, 4, v13')
    a('v_lshlrev_b32 v14, 7, v2')
    a('s_lshl_b32 s11, s50, 14\ns_lshl_b32 s57, s49, 12\ns_add_u32 s11, s11, s57\ns_add_u32 s11, s11, %d' % W_O)
    a('s_lshl_b32 s14, s50, 12\ns_lshr_b32 s57, s49, 1\ns_lshl_b32 s57, s57, 11\ns_add_u32 s14, s14, s57\ns_and_b32 s57, s49, 1\ns_lshl_b32 s57, s57, 3\ns_add_u32 s14, s14, s57\ns_add_u32 s14, s14, %d' % W_ST)
    a('v_mul_u32_u24 v15, 272, v2\nv_lshl_add_u32 v15, v3, 4, v15\ns_mul_i32 s57, s49, 2176\nv_add_u32 v15, s57, v15')
    a('v_bfe_u32 v16, v1, 4, 1\ns_lshl_b32 s57, s49, 1\nv_add_u32 v16, s57, v16\nv_mul_u32_u24 v16, 272, v16\nv_lshl_add_u32 v16, v2, 4, v16')
    a('v_lshrrev_b32 v17, 5, v1\nv_mul_u32_u24 v17, 4352, v17\nv_add_u32 v16, v16, v17')
    a('v_and_b32 v17, 31, v1\nv_lshlrev_b32 v17, 4, v17')
    a('v_mov_b32 v8, 0x%x\nv_cmp_gt_u32 vcc, 32, v1\nv_cndmask_b32 v18, v8, v17, vcc' % OOB)
    a('v_lshrrev_b32 v19, 5, v1\nv_lshl_add_u32 v19, v19, 13, v17')
    a('v_add_u32 v23, 4096, v19')
    a('s_lshl_b32 s63, s61, 14\ns_lshl_b32 s57, s49, 9\ns_add_u32 s63, s63, s57\ns_add_u32 s63, s63, %d' % W_P1)
    a('s_lshl_b32 s57, s50, 11\ns_add_u32 s15, s63, s57')
    a('s_mov_b32 s101, s61')
    down_setup(0, L_W + 69632)
    a('s_lshl_b32 s57, s50, 2\ns_add_u32 s57, s57, s49\ns_mul_i32 s58, s57, %d' % (128 * 1152))
    a('s_lshl_b32 s57, s61, 7\ns_add_u32 s58, s58, s57')
    if gate_wo: lds_spin(L_FLAG + 20, 4, 12)
    a('s_mov_b32 s96, 0')
    for k in range(16):
        if thr_wo: throttle(k)
        a('s_mov_b32 m0, s60')
        a('s_add_u32 s60, s60, 1088')
        a('buffer_load_dwordx4 v6, s[40:43], s58 offen %s lds' % wflag)
        a('s_add_u32 s58, s58, %d' % (8 * 1152))
    a('s_setprio 3')
    get_mode(12)
    WF = 128; OF = 64
    def wo_mid():
        for s in range(4):
            a('s_waitcnt vmcnt(%d)' % (5 + 12 - 4 * s))
            if s == 3: stamp(6)
            for nt in range(4):
                ad = 10 if nt % 2 == 0 else 11
                off = s * 4 * 1088 + (nt >> 1) * 64
                a('ds_read_b64_tr_b16 %s, %s offset:%d' % (v(WF + (s * 4 + nt) * 4, 2), v(ad), off))
                a('ds_read_b64_tr_b16 %s, %s offset:%d' % (v(WF + (s * 4 + nt) * 4 + 2, 2), v(ad), off + 128))
            if s == 0: a('v_lshlrev_b32 v24, 16, v20\nv_and_b32 v25, s100, v20\nv_lshlrev_b32 v26, 16, v21\nv_and_b32 v27, s100, v21')
    poll(['buffer_load_dwordx2 v[28:29], v14, s[36:39], s14 offen sc1'] +
         ['buffer_load_dwordx4 %s, v13, s[36:39], s11 offen offset:%d sc1' % (v(OF + 4 * s, 4), s * 64) for s in range(4)],
         [[28, 29]] + [range(OF + 4 * s, OF + 4 * s + 4) for s in range(4)], 8, mid=wo_mid)
    stamp(14)
    a('s_waitcnt lgkmcnt(0)')
    DD = 96
    for s in range(4):
        for nt in range(4):
            a('v_mfma_f32_16x16x32_bf16 %s, %s, %s, %s' % (v(DD + 4 * nt, 4), v(WF + (s * 4 + nt) * 4, 4), v(OF + 4 * s, 4), '0' if s == 0 else v(DD + 4 * nt, 4)))
        if s == 0:
            a('v_max_f32_dpp v30, v28, v28 row_ror:8 row_mask:0xf bank_mask:0xf')
            a('s_mov_b32 s57, 0x%x' % LOG2E)
            a('v_sub_f32 v30, v28, v30\nv_mul_f32 v30, s57, v30\nv_exp_f32 v30, v30')
        if s == 1:
            a('v_mul_f32 v30, v30, v29')
            a('v_add_f32_dpp v31, v30, v30 row_ror:8 row_mask:0xf bank_mask:0xf')
            a('v_rcp_f32 v31, v31')
        if s == 2:
            a('v_mul_f32 v30, v30, v31')
    for k in range(0, 16, 2): a('v_pk_mul_f32 %s, %s, v[30:31] op_sel_hi:[1,0]' % (v(DD + k, 2), v(DD + k, 2)))
    for k in range(16): a('v_add_f32_dpp %s, %s, %s row_ror:8 row_mask:0xf bank_mask:0xf' % (v(DD + k), v(DD + k), v(DD + k)))
    setexec(0x00ff00ff, 0x00ff00ff)
    for nt in range(4): a('ds_write_b128 v15, %s offset:%d' % (v(DD + 4 * nt, 4), L_RW + nt * 64))
    fullexec()
    a('s_waitcnt lgkmcnt(0)')
    a('s_barrier')
    a('ds_read_b128 v[32:35], v16 offset:%d' % L_RW)
    a('ds_read_b128 v[36:39], v16 offset:%d' % (L_RW + 2176))
    a('s_waitcnt lgkmcnt(0)')
    for r in range(4): a('v_add_f32 %s, %s, %s' % (v(32 + r), v(32 + r), v(36 + r)))
    for r in range(4): a('v_mov_b32 %s, %s' % (v(36 + r), v(32 + r)))
    for r in range(4): a('v_permlane32_swap_b32 %s, %s' % (v(32 + r), v(36 + r)))
    for r in range(4): a('v_add_f32 %s, %s, %s' % (v(32 + r), v(32 + r), v(36 + r)))
    for r in range(4): a('v_min_u32 %s, -2, %s' % (v(32 + r), v(32 + r)))
    a('buffer_store_dwordx4 v[32:35], v18, s[36:39], s15 offen sc1')
    stamp(8)
    if down_early: down_loads(1, False)
    poll(['buffer_load_dwordx4 %s, v19, s[36:39], s63 offen offset:%d sc1' % (v(64 + 4 * u, 4), u * 2048) for u in range(2)] +
         ['buffer_load_dwordx4 %s, v23, s[36:39], s63 offen offset:%d sc1' % (v(72 + 4 * u, 4), u * 2048) for u in range(2)],
         [range(64 + 4 * u, 68 + 4 * u) for u in range(4)], 8, slp=slp_b1)
    stamp(15)
    for r in range(4): a('v_add_f32 %s, %s, %s' % (v(64 + r), v(64 + r), v(68 + r)))
    for r in range(4): a('v_add_f32 %s, %s, %s' % (v(72 + r), v(72 + r), v(76 + r)))
    for r in range(4): a('v_add_f32 %s, %s, %s' % (v(64 + r), v(64 + r), v(72 + r)))
    for r in range(4): a('v_mov_b32 %s, %s' % (v(68 + r), v(64 + r)))
    for r in range(4): a('v_permlane32_swap_b32 %s, %s' % (v(64 + r), v(68 + r)))
    for r in range(4): a('v_add_f32 %s, %s, %s' % (v(64 + r), v(64 + r), v(68 + r)))
    a('v_cvt_pk_bf16_f32 v68, v64, v65\nv_cvt_pk_bf16_f32 v69, v66, v67')
    a('v_lshlrev_b32 v64, 16, v68\nv_and_b32 v65, s100, v68\nv_lshlrev_b32 v66, 16, v69\nv_and_b32 v67, s100, v69')
    for r in range(4): a('v_add_f32 %s, %s, %s' % (v(64 + r), v(64 + r), v(24 + r)))
    a('v_cvt_pk_bf16_f32 v68, v64, v65\nv_cvt_pk_bf16_f32 v69, v66, v67')
    a('v_min_u32 v68, -2, v68\nv_min_u32 v69, -2, v69')
    store_lg(['buffer_store_dwordx2 v[68:69], v22, s[36:39], s62 offen'])
    stamp(10)
    if not down_early:
        down_loads(1, False)
        a('s_waitcnt vmcnt(0)')
    a('s_barrier')
    stamp(11)
    down_compute(1)
    a('s_branch L_fin')

    a('L_spare:')
    a('s_sub_u32 s101, s51, 27\ns_lshl_b32 s101, s101, 1')
    down_setup(1, L_W)
    gate_w()
    a('s_mov_b32 s96, 0')
    down_loads(2, True)
    a('s_setprio 3')
    get_mode(12)
    a('s_waitcnt vmcnt(0)')
    a('s_barrier')
    stamp(6)
    down_compute(2)
    a('s_branch L_fin')

    a('L_ffn:')
    srd(44, 16, 1152)
    a('v_and_b32 v8, 31, v1\nv_lshlrev_b32 v9, 2, v8\nv_lshlrev_b32 v8, 4, v8')
    a('buffer_load_dwordx4 v[40:43], v8, s[44:47], 0 offen')
    a('buffer_load_dwordx4 v[44:47], v8, s[44:47], 0 offen offset:512')
    a('buffer_load_dword v48, v9, s[44:47], 0 offen offset:1024')
    a('s_cmp_ge_u32 s51, 9')
    a('s_cselect_b32 s40, s20, s18\ns_cselect_b32 s41, s21, s19\ns_cselect_b32 s4, 1, 0\ns_cselect_b32 s57, 9, 0')
    a('s_mov_b32 s42, %d\ns_mov_b32 s43, 0x20000' % (576 * 9216))
    a('s_sub_u32 s101, s51, s57')
    a('v_lshrrev_b32 v18, 3, v1\nv_mul_u32_u24 v18, 9216, v18\nv_bfe_u32 v8, v1, 4, 2\nv_lshlrev_b32 v8, 1, v8\nv_and_b32 v9, 7, v1\nv_xor_b32 v8, v8, v9\nv_lshl_add_u32 v18, v8, 4, v18')
    row_addrs(6, 7)
    ln_addrs(8, 9, 10)
    a('s_mul_i32 s62, s50, 9216\ns_lshl_b32 s57, s101, 10\ns_add_u32 s63, s62, s57\ns_lshl_b32 s57, s49, 8\ns_add_u32 s63, s63, s57')
    a('s_add_u32 s5, s63, %d\ns_add_u32 s63, s63, %d\ns_add_u32 s62, s62, %d' % (W_U, W_A, W_H))
    a('v_bfe_u32 v10, v1, 2, 2\nv_lshl_add_u32 v10, v3, 2, v10')
    a('v_bfe_u32 v11, v10, 1, 2\nv_xor_b32 v11, s49, v11\nv_lshlrev_b32 v11, 5, v11\nv_lshl_add_u32 v10, v10, 7, v11')
    a('v_and_b32 v11, 3, v1\nv_lshl_add_u32 v10, v11, 3, v10\nv_add_u32 v10, %d, v10\nv_add_u32 v11, 36864, v10' % L_G)
    a('v_and_b32 v13, 7, v1\nv_mul_u32_u24 v14, %d, v13\nv_lshl_add_u32 v14, v3, 4, v14' % RS)
    a('v_lshlrev_b32 v15, 4, v13\nv_bfe_u32 v16, v1, 5, 1\nv_lshl_add_u32 v15, v16, 7, v15\nv_bfe_u32 v16, v1, 4, 1\nv_lshl_add_u32 v15, v16, 3, v15')
    a('v_mov_b32 v17, 0x%x\nv_cmp_gt_u32 vcc, 8, v2\nv_cndmask_b32 v15, v17, v15, vcc' % OOB)
    a('s_lshr_b32 s61, s51, 1\ns_lshl_b32 s61, s61, 15\ns_lshl_b32 s57, s50, 12\ns_add_u32 s61, s61, s57\ns_and_b32 s57, s51, 1\ns_lshl_b32 s57, s57, 7\ns_add_u32 s61, s61, s57\ns_add_u32 s61, s61, %d' % W_P2)
    a('s_mul_i32 s57, s50, 9\ns_add_u32 s57, s57, s101\ns_lshl_b32 s57, s57, 7')
    a('s_mul_i32 s58, s49, %d\ns_add_u32 s58, s58, s57' % (144 * 9216))
    a('s_mul_i32 s59, s49, 18432\ns_add_u32 s59, s59, %d' % L_G)
    gate_w()
    a('s_mov_b32 s96, 0')
    for k in range(18):
        throttle(k)
        a('s_mov_b32 m0, s59')
        a('s_add_u32 s59, s59, 1024')
        a('buffer_load_dwordx4 v18, s[40:43], s58 offen %s lds' % wflag)
        a('s_add_u32 s58, s58, %d' % (8 * 9216))
    a('s_setprio 3')
    srd(44, 24, 9216)
    get_mode(12)
    GF = 128
    def ffn_mid():
        a('s_waitcnt vmcnt(3)')
        a('s_barrier')
        stamp(6)
        for s in range(18):
            ad = 'v10' if s < 9 else 'v11'
            a('ds_read_b64_tr_b16 %s, %s offset:%d' % (v(GF + 4 * s, 2), ad, (s % 9) * 4096))
            a('ds_read_b64_tr_b16 %s, %s offset:%d' % (v(GF + 4 * s + 2, 2), ad, (s % 9) * 4096 + 2048))
    poll(['buffer_load_dwordx4 v[20:23], v6, s[36:39], s62 offen sc1',
          'buffer_load_dwordx4 v[24:27], v6, s[36:39], s62 offen offset:512 sc1',
          'buffer_load_dword v28, v7, s[36:39], s62 offen offset:1024 sc1'],
         [range(20, 24), range(24, 28), [28]], 19, mid=ffn_mid, slp=slp_h)
    stamp(7)
    N = [52, 53, 54, 55, 56, 57, 58, 59, 60]
    layernorm([20, 21, 22, 23, 24, 25, 26, 27, 28], 64, N, 30)
    ln_write(L_HN, 8, 9, N)
    a('s_waitcnt lgkmcnt(0)')
    a('s_barrier')
    stamp(8)
    HF = 64
    def hf(s): return HF + 4 * s if s < 16 else 200 + 4 * (s - 16)
    for s in range(18):
        a('ds_read_b128 %s, v14 offset:%d' % (v(hf(s), 4), L_HN + s * 64))
        if s >= 6:
            t = s - 6
            a('s_waitcnt lgkmcnt(6)')
            a('v_mfma_f32_16x16x32_bf16 v[32:35], %s, %s, %s' % (v(GF + 4 * t, 4), v(hf(t), 4), '0' if t == 0 else 'v[32:35]'))
    for t in range(12, 18):
        a('s_waitcnt lgkmcnt(%d)' % (17 - t))
        a('v_mfma_f32_16x16x32_bf16 v[32:35], %s, %s, v[32:35]' % (v(GF + 4 * t, 4), v(hf(t), 4)))
    a('s_mov_b32 s57, 0x%x' % (LOG2E | 0x80000000))
    a('v_cvt_pk_bf16_f32 v36, v32, v33\nv_cvt_pk_bf16_f32 v37, v34, v35')
    a('s_cmp_eq_u32 s4, 0')
    a('s_cbranch_scc1 L_gate')
    a('v_min_u32 v36, -2, v36\nv_min_u32 v37, -2, v37')
    store_lg(['buffer_store_dwordx2 v[36:37], v15, s[36:39], s5 offen'])
    stamp(9)
    a('s_branch L_gu_done')
    a('L_gate:')
    def gate_mid():
        a('v_lshlrev_b32 v64, 16, v36\nv_and_b32 v65, s100, v36\nv_lshlrev_b32 v66, 16, v37\nv_and_b32 v67, s100, v37')
        for r in range(4): a('v_mul_f32 %s, s57, %s' % (v(68 + r), v(64 + r)))
        for r in range(4): a('v_exp_f32 %s, %s' % (v(68 + r), v(68 + r)))
        for r in range(4): a('v_add_f32 %s, 1.0, %s' % (v(68 + r), v(68 + r)))
        for r in range(4): a('v_rcp_f32 %s, %s' % (v(68 + r), v(68 + r)))
        for r in range(4): a('v_mul_f32 %s, %s, %s' % (v(64 + r), v(64 + r), v(68 + r)))
        a('v_cvt_pk_bf16_f32 v36, v64, v65\nv_cvt_pk_bf16_f32 v37, v66, v67')
        a('v_lshlrev_b32 v64, 16, v36\nv_and_b32 v65, s100, v36\nv_lshlrev_b32 v66, 16, v37\nv_and_b32 v67, s100, v37')
    gate_mid()
    poll(['buffer_load_dwordx2 v[38:39], v15, s[36:39], s5 offen sc1'], [[38, 39]], 19)
    stamp(10)
    a('v_lshlrev_b32 v72, 16, v38\nv_and_b32 v73, s100, v38\nv_lshlrev_b32 v74, 16, v39\nv_and_b32 v75, s100, v39')
    for r in range(4): a('v_mul_f32 %s, %s, %s' % (v(64 + r), v(64 + r), v(72 + r)))
    a('v_cvt_pk_bf16_f32 v36, v64, v65\nv_cvt_pk_bf16_f32 v37, v66, v67')
    a('v_min_u32 v36, -2, v36\nv_min_u32 v37, -2, v37')
    store_lg(['buffer_store_dwordx2 v[36:37], v15, s[36:39], s63 offen'])
    stamp(9)
    a('L_gu_done:')
    a('s_lshr_b32 s58, s50, 1')
    a('s_cmp_lg_u32 s49, s58')
    a('s_cbranch_scc1 L_fin')
    ln_write(L_H, 8, 9, [20, 21, 22, 23, 24, 25, 26, 27, 28])
    a('v_dot2_f32_bf16 v36, v52, v40, 0')
    for k in range(1, 9): a('v_dot2_f32_bf16 v36, %s, %s, v36' % (v(N[k]), v(40 + k)))
    for r in (8, 4, 2, 1):
        a('v_add_f32_dpp v36, v36, v36 row_ror:%d row_mask:0xf bank_mask:0xf' % r)
    a('v_mov_b32 v37, v36\nv_permlane16_swap_b32 v36, v37\nv_add_f32 v36, v36, v37')
    bf16r(36, 36)
    a('v_mul_f32 v36, s57, v36\nv_exp_f32 v36, v36\nv_add_f32 v36, 1.0, v36\nv_rcp_f32 v36, v36')
    bf16r(36, 36)
    a('s_and_b32 s57, s50, 1\ns_lshl_b32 s57, s57, 5')
    a('v_readlane_b32 s59, v36, s57')
    a('v_lshrrev_b32 v6, 3, v1\nv_lshlrev_b32 v6, 9, v6\nv_and_b32 v7, 7, v1\nv_lshl_add_u32 v6, v7, 4, v6')
    a('s_mul_i32 s57, s50, %d\ns_lshl_b32 s58, s51, 6\ns_add_u32 s57, s57, s58' % RS)
    a('v_and_b32 v7, 3, v1\nv_lshlrev_b32 v7, 4, v7\nv_bfe_u32 v8, v1, 2, 1\nv_lshl_add_u32 v7, v8, 3, v7\nv_add_u32 v7, s57, v7')
    a('ds_read_b64 v[20:21], v7 offset:%d' % L_H)
    a('ds_read_b64 v[22:23], v7 offset:%d' % L_HN)
    a('v_lshlrev_b32 v9, 3, v1\nv_mov_b32 v10, 0x%x\nv_cmp_gt_u32 vcc, 8, v1\nv_cndmask_b32 v9, v10, v9, vcc' % OOB)
    a('s_mul_i32 s58, s50, 1152\ns_lshl_b32 s57, s51, 6\ns_add_u32 s58, s58, s57')
    a('s_waitcnt lgkmcnt(0)')
    a('v_lshlrev_b32 v40, 16, v20\nv_and_b32 v41, s100, v20\nv_lshlrev_b32 v42, 16, v21\nv_and_b32 v43, s100, v21')
    a('v_lshlrev_b32 v44, 16, v22\nv_and_b32 v45, s100, v22\nv_lshlrev_b32 v46, 16, v23\nv_and_b32 v47, s100, v23')
    poll(['buffer_load_dwordx4 v[32:35], v6, s[36:39], s61 offen sc1', 'buffer_load_dwordx4 v[36:39], v6, s[36:39], s61 offen offset:256 sc1'], [range(32, 36), range(36, 40)], 19, slp=slp_f)
    stamp(12)
    for r in range(4): a('v_add_f32 %s, %s, %s' % (v(32 + r), v(32 + r), v(36 + r)))
    for r in range(4): a('v_add_f32_dpp %s, %s, %s row_ror:8 row_mask:0xf bank_mask:0xf' % (v(32 + r), v(32 + r), v(32 + r)))
    for r in range(4): a('v_mov_b32 %s, %s' % (v(36 + r), v(32 + r)))
    for r in range(4): a('v_permlane16_swap_b32 %s, %s' % (v(32 + r), v(36 + r)))
    for r in range(4): a('v_add_f32 %s, %s, %s' % (v(32 + r), v(32 + r), v(36 + r)))
    for r in range(4): a('v_mov_b32 %s, %s' % (v(36 + r), v(32 + r)))
    for r in range(4): a('v_permlane32_swap_b32 %s, %s' % (v(32 + r), v(36 + r)))
    for r in range(4): a('v_add_f32 %s, %s, %s' % (v(32 + r), v(32 + r), v(36 + r)))
    def rnd4(b):
        a('v_cvt_pk_bf16_f32 v36, %s, %s\nv_cvt_pk_bf16_f32 v37, %s, %s' % (v(b), v(b + 1), v(b + 2), v(b + 3)))
        a('v_lshlrev_b32 %s, 16, v36\nv_and_b32 %s, s100, v36\nv_lshlrev_b32 %s, 16, v37\nv_and_b32 %s, s100, v37' % (v(b), v(b + 1), v(b + 2), v(b + 3)))
    rnd4(32)
    for r in range(4): a('v_mul_f32 %s, s59, %s' % (v(32 + r), v(32 + r)))
    rnd4(32)
    for r in range(4): a('v_fmac_f32 %s, 0, %s' % (v(32 + r), v(44 + r)))
    for r in range(4): a('v_add_f32 %s, %s, %s' % (v(32 + r), v(44 + r), v(32 + r)))
    rnd4(32)
    for r in range(4): a('v_add_f32 %s, %s, %s' % (v(32 + r), v(40 + r), v(32 + r)))
    a('v_cvt_pk_bf16_f32 v36, v32, v33\nv_cvt_pk_bf16_f32 v37, v34, v35')
    a('buffer_store_dwordx2 v[36:37], v9, s[44:47], s58 offen')
    stamp(13)
    a('s_cmp_lg_u32 s2, 0')
    a('s_cbranch_scc1 L_fin')
    a('v_mov_b32 v36, s30\nv_mov_b32 v37, s31\nv_mov_b32 v9, 0')
    setexec(1, 0)
    a('buffer_store_dwordx2 v[36:37], v9, s[36:39], 0 offen sc1')
    a('L_fin:')
    if stamps: fullexec()
    if dbgst:
        a('s_lshr_b32 s58, s50, 1\ns_cmp_lt_u32 s51, 18\ns_cselect_b32 s58, s58, 0\ns_cmp_ge_u32 s48, 4\ns_cselect_b32 s58, s58, 0')
        a('s_cmp_lg_u32 s49, s58')
        a('s_cbranch_scc1 L_end')
        a('s_waitcnt lgkmcnt(0)')
        a('v_mov_b32 v2, 0')
        a('s_cmp_lg_u32 s48, 0')
        a('s_cbranch_scc1 L_dk')
        a('s_not_b32 s57, s64')
        a('v_writelane_b32 v2, s57, 1')
        for word, st in ((2, 0), (3, 1), (4, 3), (7, 6)): a('v_writelane_b32 v2, s%d, %d' % (64 + 2 * st, word))
        a('s_branch L_dd')
        a('L_dk:')
        for word, st in ((5, 1), (6, 3), (9, 6), (10, 14), (11, 15), (12, 7), (13, 9), (14, 12), (15, 13)): a('v_writelane_b32 v2, s%d, %d' % (64 + 2 * st, word))
        a('L_dd:')
        a('v_lshlrev_b32 v3, 2, v1')
        setexec(0xfefe, 0)
        a('global_atomic_umax v3, v2, s[26:27]')
    elif stamps:
        a('s_lshr_b32 s58, s50, 1\ns_cmp_lt_u32 s51, 18\ns_cselect_b32 s58, s58, 0\ns_cmp_ge_u32 s48, 4\ns_cselect_b32 s58, s58, 0')
        a('s_cmp_lg_u32 s49, s58')
        a('s_cbranch_scc1 L_end')
        a('s_waitcnt lgkmcnt(0)')
        a('s_and_b32 s48, s48, 4')
        a('s_lshl_b32 s57, s2, 8\ns_lshl_b32 s58, s48, 5\ns_add_u32 s57, s57, s58\ns_add_u32 s57, s57, %d' % TSOFF)
        a('s_add_u32 s28, s28, s57\ns_addc_u32 s29, s29, 0')
        a('v_mov_b32 v1, 0')
        for i in range(16):
            a('v_mov_b32 v2, s%d\nv_mov_b32 v3, s%d' % (64 + 2 * i, 65 + 2 * i))
            a('global_store_dwordx2 v1, v[2:3], s[28:29] offset:%d' % (8 * i))
    a('L_end:')
    a.lines = insert_waits(a.lines)
    return kernel_file([(NAME + '_kernel', a.text(), 256, 102, 256)], [(NAME + '_kernel', 256, 512, LDS_BYTES)])

if __name__ == '__main__':
    B = dict(gate=2, thr_wo=False)
    open('k_main.s', 'w').write(gen(cap=8, **B))
    open('k_st.s', 'w').write(gen(stamps=True, cap=8, **B))
    open('h_a.s', 'w').write(gen(cap=7, **B))
    open('h_b.s', 'w').write(gen(cap=8, **B))
    open('h_c.s', 'w').write(gen(cap=9, **B))
    open('h_d.s', 'w').write(gen(cap=6, **B))
    open('h_e.s', 'w').write(gen(cap=7, gate=2, thr_wo=False, gate_wo=False))
    open('h_f.s', 'w').write(gen(cap=7, QPOS=6, **B))
```
